```python
import torch

def _softmax(x, axis=-1):
    return torch.softmax(x, dim=axis)
def _gelu(x):
    return torch.nn.functional.gelu(x, approximate="tanh")
def _silu(x):
    return torch.nn.functional.silu(x)
def _sigmoid(x):
    return torch.sigmoid(x)
def _layernorm(x, axis=-1, eps=1e-5):
    m = x.mean(dim=axis, keepdim=True)
    v = x.var(dim=axis, keepdim=True, unbiased=False)
    return (x - m) / torch.sqrt(v + eps)
def _scatter_add(tgt, idx, src, axis=0):
    return tgt.clone().index_add_(axis, idx, src)
def _segment_sum(src, seg, n):
    out = torch.zeros((n,) + src.shape[1:], dtype=src.dtype)
    return out.index_add_(0, seg, src)
def _pad(x, pw):
    flat = tuple(v for pair in reversed(pw) for v in pair)
    return torch.nn.functional.pad(x, flat)

kernel_name = 'standalone__gqa_softmax__near_ridge'

def setup_inputs():

    _w = (lambda a: (lambda t: t.to(torch.bfloat16) if t.is_floating_point() else t)(torch.as_tensor(a)))
    B, Hq, Hkv, Sq, Sk, D = 8, 32, 16, 96, 2048, 128
    return {
        "q": _w((lambda *s: torch.randn(*s, dtype=torch.bfloat16) * 0.8)(B, Hq, Sq, D)),
        "k": _w((lambda *s: torch.randn(*s, dtype=torch.bfloat16) * 0.8)(B, Hkv, Sk, D)),
        "v": _w((lambda *s: torch.randn(*s, dtype=torch.bfloat16) * 0.05)(B, Hkv, Sk, D)),
    }

def reference(q, k, v):
    B, Hq, Sq, D = q.shape
    Hkv = k.shape[1]
    rep = Hq // Hkv
    k = (lambda x, n, axis: torch.repeat_interleave(x, n, dim=axis))(k, rep, axis=1)
    v = (lambda x, n, axis: torch.repeat_interleave(x, n, dim=axis))(v, rep, axis=1)
    scale = D ** -0.5
    scores = torch.einsum("bhqd,bhkd->bhqk", q, k) * scale
    p = _softmax(scores, axis=-1)
    return torch.einsum("bhqk,bhkd->bhqd", p, v)
```

```python
import sys

out = []
def E(s): out.append("    " + s)
def L(s): out.append(s + ":")

def O(qb, db):
    b = (qb*4+db)*16
    return b
def Qreg(qb, t):
    if qb < 2:
        return ('a', 192 + (qb*8+t)*4)
    return ('v', VQ2 + t*4)
def rr(kind, base, n):
    return f"{kind}[{base}:{base+n-1}]"

VS = 16
VP = 64
VK = 88
VV = 120
VQ2 = 152
VM = 184
VTHR = 187
VL = 190
VT = 194
VKB = 202
VVB = 203
VDMA = 204
VAD = 208
VLANE = 216
VOST = 217
NVGPR = 224

S_C = 29; S_INVC = 30; S_J = 31; S_RD = 32; S_VSLOT = 35; S_KSLOT = 36; S_SOFF = 34; S_SOFF2 = 37
S_W = 28

def S(qb, i): return VS + qb*16 + i
def P(qb, i): return VP + qb*8 + i
def Kf(t): return VK + t*4
def Vf(db, s): return VV + (db*2+s)*4

def dma_tile(srd, s_slot):
    ops = []
    ops.append(f"s_mov_b32 m0, s{s_slot}")
    ops.append("s_nop 0")
    for i in range(4):
        ops.append(f"buffer_load_dwordx4 v{VDMA+i}, s[{srd}:{srd+3}], s{S_SOFF} offen offset:{i*1024} lds")
    ops.append(f"s_add_u32 m0, s{s_slot}, 4096")
    ops.append("s_nop 0")
    for i in range(4):
        ops.append(f"buffer_load_dwordx4 v{VDMA+i}, s[{srd}:{srd+3}], s{S_SOFF2} offen offset:{i*1024} lds")
    return ops

def advance_rd():
    return [f"s_add_u32 s{S_RD}, s{S_RD}, 8192",
            f"s_cmp_ge_u32 s{S_RD}, s38",
            f"s_cselect_b32 s{S_RD}, s39, s{S_RD}"]

def softmax_ops(qb, lbl):
    s = lambda i: f"v{S(qb,i)}"
    t0, t1, t2 = VT, VT+1, VT+2
    head = []
    head.append(f"v_max3_f32 v{t0}, {s(0)}, {s(1)}, {s(2)}")
    head.append(f"v_max3_f32 v{t1}, {s(3)}, {s(4)}, {s(5)}")
    head.append(f"v_max3_f32 v{t0}, v{t0}, {s(6)}, {s(7)}")
    head.append(f"v_max3_f32 v{t1}, v{t1}, {s(8)}, {s(9)}")
    head.append(f"v_max3_f32 v{t0}, v{t0}, {s(10)}, {s(11)}")
    head.append(f"v_max3_f32 v{t1}, v{t1}, {s(12)}, {s(13)}")
    head.append(f"v_max3_f32 v{t0}, v{t0}, {s(14)}, {s(15)}")
    head.append(f"v_max_f32 v{t0}, v{t0}, v{t1}")
    head.append(f"v_mov_b32 v{t1}, v{t0}")
    head.append("s_nop 1")
    head.append(f"v_permlane32_swap_b32 v{t0}, v{t1}")
    head.append(f"v_max_f32 v{t0}, v{t0}, v{t1}")
    head.append(f"v_cmp_gt_f32 vcc, v{t0}, v{VTHR+qb}")
    head.append(f"s_cbranch_vccnz RARE_{lbl}\nBACK_{lbl}:")
    tail = []
    m = f"v{VM+qb}"
    l = f"v{VL+qb}"
    seq = []
    for i in range(16 + 4):
        if i < 16:
            seq.append(f"v_fma_f32 {s(i)}, {s(i)}, s{S_C}, -{m}")
        if 0 <= i-1 < 16:
            seq.append(f"v_exp_f32 {s(i-1)}, {s(i-1)}")
        if 0 <= i-3 < 16:
            seq.append(f"v_add_f32 {l}, {l}, {s(i-3)}")
            if (i-3) % 2 == 1:
                k = (i-3)//2
                seq.append(f"v_cvt_pk_bf16_f32 v{P(qb,k)}, {s(2*k)}, {s(2*k+1)}")
    tail = seq
    return head, tail

def rare_path(qb, lbl):
    t0, t1, t2, t3 = VT, VT+1, VT+2, VT+3
    L(f"RARE_{lbl}")
    m = f"v{VM+qb}"
    E(f"v_mul_f32 v{t1}, s{S_C}, v{t0}")
    E(f"v_max_f32 v{t1}, v{t1}, {m}")
    E(f"v_sub_f32 v{t2}, {m}, v{t1}")
    E(f"v_exp_f32 v{t2}, v{t2}")
    E(f"v_mov_b32 {m}, v{t1}")
    E(f"v_add_f32 v{t1}, 0x41000000, v{t1}")
    E(f"v_mul_f32 v{VTHR+qb}, s{S_INVC}, v{t1}")
    E(f"v_mul_f32 v{VL+qb}, v{VL+qb}, v{t2}")
    for db in range(4):
        for r in range(16):
            a = O(qb, db) + r
            tt = VT + 3 + (r % 4)
            E(f"v_accvgpr_read_b32 v{tt}, a{a}")
            E(f"v_mul_f32 v{tt}, v{tt}, v{t2}")
            E(f"v_accvgpr_write_b32 a{a}, v{tt}")
    E(f"s_branch BACK_{lbl}")

def qk_mfmas(qb):
    ops = []
    for t in range(8):
        k, b = Qreg(qb, t)
        c = "0" if t == 0 else f"v[{S(qb,0)}:{S(qb,15)}]"
        ops.append(f"v_mfma_f32_32x32x16_bf16 v[{S(qb,0)}:{S(qb,15)}], v[{Kf(t)}:{Kf(t)+3}], {rr(k,b,4)}, {c}")
    return ops

def pv_mfmas(qb):
    ops = []
    for s in range(2):
        for db in range(4):
            o = O(qb, db)
            ops.append(f"v_mfma_f32_32x32x16_bf16 a[{o}:{o+15}], v[{Vf(db,s)}:{Vf(db,s)+3}], v[{P(qb,4*s)}:{P(qb,4*s)+3}], a[{o}:{o+15}]")
    return ops

def k_reads():
    pre = [f"v_add_u32 v{VAD}, s{S_RD}, v{VKB}"]
    per = []
    for t in range(8):
        a = VAD + 1 + (t % 4)
        if t == 0:
            per.append([f"ds_read_b128 v[{Kf(t)}:{Kf(t)+3}], v{VAD}"])
        else:
            per.append([f"v_xor_b32 v{a}, {t<<5}, v{VAD}", f"ds_read_b128 v[{Kf(t)}:{Kf(t)+3}], v{a}"])
    return pre, per

def v_reads():
    pre = [f"v_add_u32 v{VAD}, s{S_RD}, v{VVB}"]
    per = {}
    for s in range(2):
        for db in range(4):
            lst = []
            for sec in range(2):
                x = (db << 6) ^ (sec << 5)
                a = VAD + 1 + ((db*2+sec) % 4)
                off = sec*2048 + s*4096
                r = Vf(db, s) + 2*sec
                if x == 0:
                    lst.append(f"ds_read_b64_tr_b16 v[{r}:{r+1}], v{VAD} offset:{off}")
                else:
                    lst.append(f"v_xor_b32 v{a}, {x}, v{VAD}")
                    lst.append(f"ds_read_b64_tr_b16 v[{r}:{r+1}], v{a} offset:{off}")
            per[(s, db)] = lst
    return pre, per

def emit_slot(qb, lbl):
    nq = (qb+1) % 3
    pq = (qb+2) % 3
    qk = qk_mfmas(nq)
    pv = pv_mfmas(pq)
    head, tail = softmax_ops(qb, lbl)
    aux_qk = [[] for _ in range(8)]
    aux_pv = [[] for _ in range(8)]
    pre = []
    if qb == 0:
        vpre, vper = v_reads()
        mid = ["s_waitcnt vmcnt(32)"] + vpre
        idx = 0
        for s in range(2):
            for db in range(4):
                aux_pv[idx] += vper[(s, db)]
                idx += 1
        aux_pv[7] += [f"s_mov_b32 s{S_VSLOT}, s{S_RD}"] + advance_rd()
        aux_qk[7] += mid
    elif qb == 1:
        kpre, kper = k_reads()
        pre = ["s_waitcnt lgkmcnt(0)"] + dma_tile(16, S_VSLOT) + ["s_waitcnt vmcnt(32)"] + kpre
        for t in range(8):
            aux_qk[t] += kper[t]
        aux_qk[7] += [f"s_mov_b32 s{S_KSLOT}, s{S_RD}"] + advance_rd()
    else:
        pre = ["s_waitcnt lgkmcnt(0)"] + dma_tile(20, S_KSLOT)
    mf = list(zip(qk, aux_qk)) + list(zip(pv, aux_pv))
    valu = head + tail
    for p in pre: E(p)
    n = len(valu)
    pos = 0
    for i, (m, aux) in enumerate(mf):
        E(m)
        for a in aux: E(a)
        end = (n * (i+1) + 15) // 16
        while pos < end:
            v = valu[pos]
            if v.endswith(":"): out.append(v)
            else: E(v)
            pos += 1

hdr = open('standalone__gqa_softmax__near_ridge.s.ref').read().split('\n')
for line in hdr:
    if line.startswith('; @launch'):
        out.append("; @launch grid=(256,1,1) block=(256,1,1) lds=163840")
        continue
    if line.startswith(';'):
        out.append(line); continue
    break
out.append('.amdgcn_target "amdgcn-amd-amdhsa--gfx950"')
out.append('.text')
out.append('.globl standalone__gqa_softmax__near_ridge_kernel')
out.append('.p2align 8')
out.append('.type standalone__gqa_softmax__near_ridge_kernel,@function')
L("standalone__gqa_softmax__near_ridge_kernel")
E("s_cmp_ge_u32 s2, 256")
E("s_cbranch_scc1 L_END")
E("s_load_dwordx4 s[4:7], s[0:1], 0")
E("s_load_dwordx4 s[8:11], s[0:1], 16")
E(f"v_lshrrev_b32 v1, 6, v0")
E("s_nop 0")
E(f"v_readfirstlane_b32 s{S_W}, v1")
E(f"v_and_b32 v{VLANE}, 63, v0")
E("s_and_b32 s40, s2, 7")
E("s_lshr_b32 s41, s2, 3")
E("s_lshr_b32 s42, s41, 1")
E("s_lshl_b32 s42, s42, 3")
E("s_add_u32 s42, s42, s40")
E("s_and_b32 s41, s41, 1")
E("s_lshl_b32 s43, s42, 1")
E("s_add_u32 s43, s43, s41")
E("s_waitcnt lgkmcnt(0)")
E("s_mul_i32 s44, s43, 24576")
E("s_add_u32 s12, s4, s44"); E("s_addc_u32 s13, s5, 0"); E("s_mov_b32 s14, 24576"); E("s_mov_b32 s15, 0x00020000")
E("s_add_u32 s24, s10, s44"); E("s_addc_u32 s25, s11, 0"); E("s_mov_b32 s26, 24576"); E("s_mov_b32 s27, 0x00020000")
E("s_lshl_b32 s44, s42, 19")
E(f"s_lshl_b32 s45, s{S_W}, 17")
E("s_add_u32 s44, s44, s45")
E("s_add_u32 s16, s6, s44"); E("s_addc_u32 s17, s7, 0"); E("s_mov_b32 s18, 131072"); E("s_mov_b32 s19, 0x00020000")
E("s_add_u32 s20, s8, s44"); E("s_addc_u32 s21, s9, 0"); E("s_mov_b32 s22, 131072"); E("s_mov_b32 s23, 0x00020000")
E(f"s_mul_i32 s39, s{S_W}, 40960")
E("s_add_u32 s38, s39, 40960")
E(f"s_mov_b32 s{S_RD}, s39")
import math
c = (128 ** -0.5) * math.log2(math.e)
import struct
def f2u(x): return struct.unpack('<I', struct.pack('<f', x))[0]
E(f"s_mov_b32 s{S_C}, 0x{f2u(c):08x}")
E(f"s_mov_b32 s{S_INVC}, 0x{f2u(1.0/c):08x}")
E(f"v_lshrrev_b32 v2, 5, v{VLANE}")
E(f"v_and_b32 v3, 31, v{VLANE}")
E("v_and_b32 v4, 3, v3")
E("v_lshlrev_b32 v4, 2, v4")
E("v_bfe_u32 v5, v3, 2, 2")
E("v_or_b32 v4, v4, v5")
E("v_xor_b32 v4, v4, v2")
E("v_lshlrev_b32 v4, 4, v4")
E(f"v_lshl_add_u32 v{VKB}, v3, 8, v4")
E(f"v_bfe_u32 v4, v{VLANE}, 4, 1")
E(f"v_bfe_u32 v5, v{VLANE}, 2, 2")
E(f"v_and_b32 v6, 3, v{VLANE}")
E("v_lshrrev_b32 v7, 1, v6")
E("v_lshl_add_u32 v7, v4, 1, v7")
E("v_xor_b32 v7, v7, v2")
E("v_lshl_or_b32 v7, v5, 2, v7")
E("v_lshlrev_b32 v7, 4, v7")
E("v_and_b32 v6, 1, v6")
E("v_lshl_add_u32 v7, v6, 3, v7")
E("v_lshl_add_u32 v8, v2, 2, v5")
E(f"v_lshl_add_u32 v{VVB}, v8, 8, v7")
E(f"v_lshrrev_b32 v4, 4, v{VLANE}")
E(f"v_and_b32 v5, 15, v{VLANE}")
E("v_lshlrev_b32 v6, 2, v4")
E("v_xor_b32 v5, v5, v6")
E("v_lshlrev_b32 v5, 4, v5")
E(f"v_lshl_add_u32 v{VDMA}, v4, 8, v5")
for ii in range(1, 4):
    E(f"v_xor_b32 v{VDMA+ii}, {ii<<4}, v{VDMA}")
E(f"s_lshl_b32 s44, s{S_W}, 6")
E("v_lshlrev_b32 v4, 3, v2")
E("v_lshl_add_u32 v4, v3, 8, v4")
E(f"v_add_u32 v{VOST}, s44, v4")
E(f"s_mov_b32 s46, s39")
for n in range(5):
    E(f"s_mov_b32 s{S_SOFF}, {(n//2)*8192}")
    E(f"s_mov_b32 s{S_SOFF2}, {(n//2)*8192+4096}")
    for o in dma_tile(16 if n % 2 == 0 else 20, 46): E(o)
    E("s_add_u32 s46, s46, 8192")
E("v_lshlrev_b32 v4, 4, v2")
E("v_lshl_add_u32 v4, v3, 8, v4")
for qb in range(3):
    E(f"v_add_u32 v5, {qb*8192}, v4")
    for t in range(8):
        k, b = Qreg(qb, t)
        E(f"buffer_load_dwordx4 {rr(k,b,4)}, v5, s[12:15], 0 offen offset:{32*t}")
for qb in range(3):
    E(f"v_mov_b32 v{VM+qb}, 0xff800000")
    E(f"v_mov_b32 v{VTHR+qb}, 0xff800000")
    E(f"v_mov_b32 v{VL+qb}, 0")
for i in range(24): E(f"v_mov_b32 v{VP+i}, 0")
for i in range(32): E(f"v_mov_b32 v{VV+i}, 0")
for i in range(192): E(f"v_accvgpr_write_b32 a{i}, 0")
E("s_waitcnt vmcnt(0)")
kpre, kper = k_reads()
for o in kpre: E(o)
for t in range(8):
    for o in kper[t]: E(o)
E(f"s_mov_b32 s{S_KSLOT}, s{S_RD}")
for o in advance_rd(): E(o)
E("s_waitcnt lgkmcnt(0)")
E(f"s_mov_b32 s{S_SOFF}, {2*8192}")
E(f"s_mov_b32 s{S_SOFF2}, {2*8192+4096}")
for o in dma_tile(20, S_KSLOT): E(o)
for o in qk_mfmas(0): E(o)
E("s_nop 15")
E(f"s_mov_b32 s{S_J}, 0")
E(f"s_mov_b32 s{S_SOFF}, {3*8192}")
E(f"s_mov_b32 s{S_SOFF2}, {3*8192+4096}")
L("LOOP")
for qb in range(3):
    emit_slot(qb, f"{qb}")
E(f"s_add_u32 s{S_SOFF}, s{S_SOFF}, 8192")
E(f"s_add_u32 s{S_SOFF2}, s{S_SOFF2}, 8192")
E(f"s_add_u32 s{S_J}, s{S_J}, 1")
E(f"s_cmp_lt_u32 s{S_J}, 16")
E("s_cbranch_scc1 LOOP")
for o in pv_mfmas(2): E(o)
E("s_nop 15"); E("s_nop 7")
for qb in range(3):
    E(f"v_mov_b32 v{VT}, v{VL+qb}")
    E("s_nop 1")
    E(f"v_permlane32_swap_b32 v{VL+qb}, v{VT}")
    E(f"v_add_f32 v{VL+qb}, v{VL+qb}, v{VT}")
E("s_waitcnt vmcnt(0) lgkmcnt(0)")
E("s_barrier")
E(f"s_mul_i32 s44, s{S_W}, 768")
E(f"v_and_b32 v3, 31, v{VLANE}")
E("v_lshlrev_b32 v4, 3, v3")
E("v_add_u32 v5, s44, v4")
for qb in range(3):
    E(f"v_mov_b32 v{VT}, v{VM+qb}")
    E(f"v_mov_b32 v{VT+1}, v{VL+qb}")
    E(f"ds_write_b64 v5, v[{VT}:{VT+1}] offset:{qb*256}")
E("s_waitcnt lgkmcnt(0)")
E("s_barrier")
for qb in range(3):
    for w in range(4):
        r = 16 + (qb*4+w)*2
        E(f"ds_read_b64 v[{r}:{r+1}], v4 offset:{w*768+qb*256}")
E("s_waitcnt lgkmcnt(0)")
for qb in range(3):
    r = 16 + qb*8
    E(f"v_max_f32 v{VT}, v{r}, v{r+2}")
    E(f"v_max3_f32 v{VT}, v{VT}, v{r+4}, v{r+6}")
    for w in range(4):
        E(f"v_sub_f32 v{r+2*w}, v{r+2*w}, v{VT}")
        E(f"v_exp_f32 v{r+2*w}, v{r+2*w}")
    E("s_nop 0")
    E(f"v_mul_f32 v{VT+1}, v{r}, v{r+1}")
    for w in range(1, 4):
        E(f"v_fmac_f32 v{VT+1}, v{r+2*w}, v{r+2*w+1}")
    E(f"v_rcp_f32 v{VT+1}, v{VT+1}")
    E(f"v_sub_f32 v{VT+2}, v{VM+qb}, v{VT}")
    E(f"v_exp_f32 v{VT+2}, v{VT+2}")
    E("s_nop 0")
    E(f"v_mul_f32 v{VM+qb}, v{VT+1}, v{VT+2}")
E(f"v_lshlrev_b32 v6, 4, v{VLANE}")
for w in range(4):
    if w < 3:
        E(f"s_cmp_eq_u32 s{S_W}, {w}")
        E(f"s_cbranch_scc1 EPI_{w}")
    else:
        E(f"s_branch EPI_{w}")
BASE = 4096
def region(dw, si, qb, r4):
    return BASE + (((dw*3+si)*3+qb)*4 + r4)*1024
for w in range(4):
    L(f"EPI_{w}")
    for dw in range(4):
        if dw == w: continue
        si = w if w < dw else w-1
        for qb in range(3):
            for r4 in range(4):
                t = 64 + ((qb*4+r4) % 4)*4
                for i in range(4):
                    a = O(qb, dw) + r4*4 + i
                    E(f"v_accvgpr_read_b32 v{t+i}, a{a}")
                for i in range(4):
                    E(f"v_mul_f32 v{t+i}, v{t+i}, v{VM+qb}")
                addr = region(dw, si, qb, r4)
                if addr < 65536-1024:
                    E(f"ds_write_b128 v6, v[{t}:{t+3}] offset:{addr}")
                else:
                    E(f"v_add_u32 v7, {addr}, v6")
                    E(f"ds_write_b128 v7, v[{t}:{t+3}]")
    for qb in range(3):
        for r in range(16):
            E(f"v_accvgpr_read_b32 v{16+qb*16+r}, a{O(qb,w)+r}")
            E(f"v_mul_f32 v{16+qb*16+r}, v{16+qb*16+r}, v{VM+qb}")
    E("s_waitcnt lgkmcnt(0)")
    E("s_barrier")
    for si in range(3):
        for qb in range(3):
            for r4 in range(4):
                t = 64 + (qb*4+r4)*4
                addr = region(w, si, qb, r4)
                if addr < 65536-1024:
                    E(f"ds_read_b128 v[{t}:{t+3}], v6 offset:{addr}")
                else:
                    E(f"v_add_u32 v7, {addr}, v6")
                    E(f"ds_read_b128 v[{t}:{t+3}], v7")
        E("s_waitcnt lgkmcnt(0)")
        for i in range(48):
            E(f"v_add_f32 v{16+i}, v{16+i}, v{64+i}")
    for qb in range(3):
        for r4 in range(4):
            b = 16 + qb*16 + r4*4
            E(f"v_cvt_pk_bf16_f32 v{b}, v{b}, v{b+1}")
            E(f"v_cvt_pk_bf16_f32 v{b+1}, v{b+2}, v{b+3}")
            E(f"buffer_store_dwordx2 v[{b}:{b+1}], v{VOST}, s[24:27], 0 offen offset:{qb*8192+r4*16}" if qb*8192+r4*16 < 4096 else
              f"v_add_u32 v7, {qb*8192}, v{VOST}\n    buffer_store_dwordx2 v[{b}:{b+1}], v7, s[24:27], 0 offen offset:{r4*16}")
    E("s_endpgm")
L("L_END")
E("s_endpgm")
for qb in range(3):
    rare_path(qb, f"{qb}")
out.append('.section .rodata,"a"')
out.append('.p2align 6')
out.append('.amdhsa_kernel standalone__gqa_softmax__near_ridge_kernel')
out.append(f'  .amdhsa_next_free_vgpr 512')
out.append('  .amdhsa_next_free_sgpr 64')
out.append('  .amdhsa_accum_offset 256')
out.append('  .amdhsa_group_segment_fixed_size 0')
out.append('  .amdhsa_kernarg_size 48')
out.append('  .amdhsa_user_sgpr_count 2')
out.append('  .amdhsa_user_sgpr_kernarg_segment_ptr 1')
out.append('  .amdhsa_system_sgpr_workgroup_id_x 1')
out.append('.end_amdhsa_kernel')
open(sys.argv[1] if len(sys.argv) > 1 else 'standalone__gqa_softmax__near_ridge.s', 'w').write("\n".join(out) + "\n")
```

```python
import sys

out = []
import os
PROF = int(os.environ.get('PROF','0'))
PROFWG = int(os.environ.get('PROFWG','0'))
NODMA = int(os.environ.get('NODMA','0'))
ILV = int(os.environ.get('ILV','0'))
HALF = int(os.environ.get('HALF','0'))
GS = 32768 if ILV else 8192
NBLK = 8 if HALF else 16
NT = os.environ.get('NT','')
if NT: NT += ' '
NOCOMP = int(os.environ.get('NOCOMP','0'))
def E(s): out.append("    " + s)
def L(s): out.append(s + ":")

def O(qb, db):
    b = (qb*4+db)*16
    return b
def Qreg(qb, t):
    if qb < 2:
        return ('a', 192 + (qb*8+t)*4)
    return ('v', VQ2 + t*4)
def rr(kind, base, n):
    return f"{kind}[{base}:{base+n-1}]"

VS = 16
VP = 64
VK = 88
VV = 120
VQ2 = 152
VM = 184
VTHR = 187
VL = 190
VT = 194
VKB = 202
VVB = 203
VDMA = 204
VAD = 208
VLANE = 216
VOST = 217
NVGPR = 224

S_C = 29; S_INVC = 30; S_J = 31; S_RD = 32; S_VSLOT = 35; S_KSLOT = 36; S_SOFF = 34; S_SOFF2 = 37
S_W = 28

def S(qb, i): return VS + qb*16 + i
def P(qb, i): return VP + qb*8 + i
def Kf(t): return VK + t*4
def Vf(db, s): return VV + (db*2+s)*4

def dma_tile(srd, s_slot):
    ops = []
    if NODMA and s_slot != 46: return ops
    ops.append(f"s_mov_b32 m0, s{s_slot}")
    ops.append("s_nop 0")
    for i in range(4):
        ops.append(f"buffer_load_dwordx4 v{VDMA+i}, s[{srd}:{srd+3}], s{S_SOFF} offen offset:{i*1024} {NT}lds")
    ops.append(f"s_add_u32 m0, s{s_slot}, 4096")
    ops.append("s_nop 0")
    for i in range(4):
        ops.append(f"buffer_load_dwordx4 v{VDMA+i}, s[{srd}:{srd+3}], s{S_SOFF2} offen offset:{i*1024} {NT}lds")
    return ops

def advance_rd():
    return [f"s_add_u32 s{S_RD}, s{S_RD}, 8192",
            f"s_cmp_ge_u32 s{S_RD}, s38",
            f"s_cselect_b32 s{S_RD}, s39, s{S_RD}"]

def softmax_ops(qb, lbl):
    s = lambda i: f"v{S(qb,i)}"
    t0, t1, t2 = VT, VT+1, VT+2
    head = []
    head.append(f"v_max3_f32 v{t0}, {s(0)}, {s(1)}, {s(2)}")
    head.append(f"v_max3_f32 v{t1}, {s(3)}, {s(4)}, {s(5)}")
    head.append(f"v_max3_f32 v{t0}, v{t0}, {s(6)}, {s(7)}")
    head.append(f"v_max3_f32 v{t1}, v{t1}, {s(8)}, {s(9)}")
    head.append(f"v_max3_f32 v{t0}, v{t0}, {s(10)}, {s(11)}")
    head.append(f"v_max3_f32 v{t1}, v{t1}, {s(12)}, {s(13)}")
    head.append(f"v_max3_f32 v{t0}, v{t0}, {s(14)}, {s(15)}")
    head.append(f"v_max_f32 v{t0}, v{t0}, v{t1}")
    head.append(f"v_mov_b32 v{t1}, v{t0}")
    head.append("s_nop 1")
    head.append(f"v_permlane32_swap_b32 v{t0}, v{t1}")
    head.append(f"v_max_f32 v{t0}, v{t0}, v{t1}")
    head.append(f"v_cmp_gt_f32 vcc, v{t0}, v{VTHR+qb}")
    head.append(f"s_cbranch_vccnz RARE_{lbl}\nBACK_{lbl}:")
    tail = []
    m = f"v{VM+qb}"
    l = f"v{VL+qb}"
    seq = []
    for i in range(16 + 4):
        if i < 16:
            seq.append(f"v_fma_f32 {s(i)}, {s(i)}, s{S_C}, -{m}")
        if 0 <= i-1 < 16:
            seq.append(f"v_exp_f32 {s(i-1)}, {s(i-1)}")
        if 0 <= i-3 < 16:
            seq.append(f"v_add_f32 {l}, {l}, {s(i-3)}")
            if (i-3) % 2 == 1:
                k = (i-3)//2
                seq.append(f"v_cvt_pk_bf16_f32 v{P(qb,k)}, {s(2*k)}, {s(2*k+1)}")
    tail = seq
    return head, tail

def rare_path(qb, lbl):
    t0, t1, t2, t3 = VT, VT+1, VT+2, VT+3
    L(f"RARE_{lbl}")
    m = f"v{VM+qb}"
    E(f"v_mul_f32 v{t1}, s{S_C}, v{t0}")
    E(f"v_max_f32 v{t1}, v{t1}, {m}")
    E(f"v_sub_f32 v{t2}, {m}, v{t1}")
    E(f"v_exp_f32 v{t2}, v{t2}")
    E(f"v_mov_b32 {m}, v{t1}")
    E(f"v_add_f32 v{t1}, 0x41000000, v{t1}")
    E(f"v_mul_f32 v{VTHR+qb}, s{S_INVC}, v{t1}")
    E(f"v_mul_f32 v{VL+qb}, v{VL+qb}, v{t2}")
    for db in range(4):
        for r in range(16):
            a = O(qb, db) + r
            tt = VT + 3 + (r % 4)
            E(f"v_accvgpr_read_b32 v{tt}, a{a}")
            E(f"v_mul_f32 v{tt}, v{tt}, v{t2}")
            E(f"v_accvgpr_write_b32 a{a}, v{tt}")
    E(f"s_branch BACK_{lbl}")

def qk_mfmas(qb):
    ops = []
    for t in range(8):
        k, b = Qreg(qb, t)
        c = "0" if t == 0 else f"v[{S(qb,0)}:{S(qb,15)}]"
        ops.append(f"v_mfma_f32_32x32x16_bf16 v[{S(qb,0)}:{S(qb,15)}], v[{Kf(t)}:{Kf(t)+3}], {rr(k,b,4)}, {c}")
    return ops

def pv_mfmas(qb):
    ops = []
    for s in range(2):
        for db in range(4):
            o = O(qb, db)
            ops.append(f"v_mfma_f32_32x32x16_bf16 a[{o}:{o+15}], v[{Vf(db,s)}:{Vf(db,s)+3}], v[{P(qb,4*s)}:{P(qb,4*s)+3}], a[{o}:{o+15}]")
    return ops

def k_reads():
    pre = [f"v_add_u32 v{VAD}, s{S_RD}, v{VKB}"]
    per = []
    for t in range(8):
        a = VAD + 1 + (t % 4)
        if t == 0:
            per.append([f"ds_read_b128 v[{Kf(t)}:{Kf(t)+3}], v{VAD}"])
        else:
            per.append([f"v_xor_b32 v{a}, {t<<5}, v{VAD}", f"ds_read_b128 v[{Kf(t)}:{Kf(t)+3}], v{a}"])
    return pre, per

def v_reads():
    pre = [f"v_add_u32 v{VAD}, s{S_RD}, v{VVB}"]
    per = {}
    for s in range(2):
        for db in range(4):
            lst = []
            for sec in range(2):
                x = (db << 6) ^ (sec << 5)
                a = VAD + 1 + ((db*2+sec) % 4)
                off = sec*2048 + s*4096
                r = Vf(db, s) + 2*sec
                if x == 0:
                    lst.append(f"ds_read_b64_tr_b16 v[{r}:{r+1}], v{VAD} offset:{off}")
                else:
                    lst.append(f"v_xor_b32 v{a}, {x}, v{VAD}")
                    lst.append(f"ds_read_b64_tr_b16 v[{r}:{r+1}], v{a} offset:{off}")
            per[(s, db)] = lst
    return pre, per

def cost(op):
    if op.startswith('v_exp') or op.startswith('v_rcp'): return 8
    if op.startswith('v_'): return 4
    if op.startswith('ds_'): return 4
    if op.startswith('buffer_load'): return 12
    if op.startswith('s_nop'): return 4
    return 1

def emit_slot(qb, lbl):
    nq = (qb+1) % 3
    pq = (qb+2) % 3
    qk = qk_mfmas(nq)
    pv = pv_mfmas(pq)
    head, tail = softmax_ops(qb, lbl)
    aux = [[] for _ in range(16)]
    pre = [[] for _ in range(16)]
    if qb == 0:
        vpre, vper = v_reads()
        pre[8] += ["s_waitcnt vmcnt(32)"] + vpre
        idx = 8
        for s_ in range(2):
            for db in range(4):
                aux[idx] += vper[(s_, db)]
                idx += 1
        aux[15] += [f"s_mov_b32 s{S_VSLOT}, s{S_RD}"] + advance_rd()
    elif qb == 1:
        kpre, kper = k_reads()
        pre[0] += ["s_waitcnt vmcnt(24)"] + kpre
        for t in range(8):
            aux[t] += kper[t]
        aux[7] += [f"s_mov_b32 s{S_KSLOT}, s{S_RD}"] + advance_rd()
        pre[8] += ["s_waitcnt lgkmcnt(8)"]
        d = dma_tile(16, S_VSLOT)
        if d:
            aux[8] += d[0:3]; aux[9] += d[3:4]; aux[10] += d[4:5]; aux[11] += d[5:6]
            aux[12] += d[6:9]; aux[13] += d[9:10]; aux[14] += d[10:11]; aux[15] += d[11:12]
    else:
        pre[0] += ["s_waitcnt lgkmcnt(0)"]
        d = dma_tile(20, S_KSLOT)
        if d:
            aux[0] += d[0:3]; aux[1] += d[3:4]; aux[2] += d[4:5]; aux[3] += d[5:6]
            aux[4] += d[6:9]; aux[5] += d[9:10]; aux[6] += d[10:11]; aux[7] += d[11:12]
    mf = qk + pv
    valu = head + tail
    total = sum(cost(v) for v in valu) + sum(cost(o) for l_ in aux for o in l_) + sum(cost(o) for l_ in pre for o in l_)
    pos = 0
    acc = 0
    for i in range(16):
        for o in pre[i]:
            E(o); acc += cost(o)
        if not NOCOMP: E(mf[i])
        for o in aux[i]:
            E(o); acc += cost(o)
        if NOCOMP: continue
        target = total * (i+1) / 16.0
        while pos < len(valu) and (acc + cost(valu[pos])/2 <= target or i == 15):
            E(valu[pos]); acc += cost(valu[pos]); pos += 1

hdr = open('standalone__gqa_softmax__near_ridge.s.ref').read().split('\n')
for line in hdr:
    if line.startswith('; @launch'):
        out.append("; @launch grid=(256,1,1) block=(256,1,1) lds=163840")
        continue
    if line.startswith(';'):
        out.append(line); continue
    break
out.append('.amdgcn_target "amdgcn-amd-amdhsa--gfx950"')
out.append('.text')
out.append('.globl standalone__gqa_softmax__near_ridge_kernel')
out.append('.p2align 8')
out.append('.type standalone__gqa_softmax__near_ridge_kernel,@function')
L("standalone__gqa_softmax__near_ridge_kernel")
E("s_cmp_ge_u32 s2, 256")
E("s_cbranch_scc1 L_END")
E("s_load_dwordx4 s[4:7], s[0:1], 0")
E("s_load_dwordx4 s[8:11], s[0:1], 16")
if PROF:
    E("s_load_dwordx2 s[60:61], s[0:1], 32")
    E("s_memtime s[50:51]")
    E("s_memrealtime s[64:65]")
E(f"v_lshrrev_b32 v1, 6, v0")
E("s_nop 0")
E(f"v_readfirstlane_b32 s{S_W}, v1")
E(f"v_and_b32 v{VLANE}, 63, v0")
E("s_and_b32 s40, s2, 7")
E("s_lshr_b32 s41, s2, 3")
E("s_lshr_b32 s42, s41, 1")
E("s_lshl_b32 s42, s42, 3")
E("s_add_u32 s42, s42, s40")
E("s_and_b32 s41, s41, 1")
E("s_lshl_b32 s43, s42, 1")
E("s_add_u32 s43, s43, s41")
E("s_waitcnt lgkmcnt(0)")
E("s_mul_i32 s44, s43, 24576")
E("s_add_u32 s12, s4, s44"); E("s_addc_u32 s13, s5, 0"); E("s_mov_b32 s14, 24576"); E("s_mov_b32 s15, 0x00020000")
E("s_add_u32 s24, s10, s44"); E("s_addc_u32 s25, s11, 0"); E("s_mov_b32 s26, 24576"); E("s_mov_b32 s27, 0x00020000")
E("s_lshl_b32 s44, s42, 19")
E(f"s_lshl_b32 s45, s{S_W}, {13 if ILV else (16 if HALF else 17)}")
if HALF:
    E("s_lshl_b32 s47, s41, 18")
    E("s_add_u32 s45, s45, s47")
E("s_add_u32 s44, s44, s45")
if ILV:
    E(f"s_sub_u32 s47, {524288 if not HALF else 262144}, s45")
    if HALF: E("s_lshl_b32 s47, s%d, 13" % S_W); E("s_sub_u32 s47, 262144, s47")
else:
    E(f"s_mov_b32 s47, {131072 if not HALF else 65536}")
E("s_add_u32 s16, s6, s44"); E("s_addc_u32 s17, s7, 0"); E("s_mov_b32 s18, s47"); E("s_mov_b32 s19, 0x00020000")
E("s_add_u32 s20, s8, s44"); E("s_addc_u32 s21, s9, 0"); E("s_mov_b32 s22, s47"); E("s_mov_b32 s23, 0x00020000")
E(f"s_mul_i32 s39, s{S_W}, 40960")
E("s_add_u32 s38, s39, 40960")
E(f"s_mov_b32 s{S_RD}, s39")
import math
c = (128 ** -0.5) * math.log2(math.e)
import struct
def f2u(x): return struct.unpack('<I', struct.pack('<f', x))[0]
E(f"s_mov_b32 s{S_C}, 0x{f2u(c):08x}")
E(f"s_mov_b32 s{S_INVC}, 0x{f2u(1.0/c):08x}")
E(f"v_lshrrev_b32 v2, 5, v{VLANE}")
E(f"v_and_b32 v3, 31, v{VLANE}")
E("v_and_b32 v4, 3, v3")
E("v_lshlrev_b32 v4, 2, v4")
E("v_bfe_u32 v5, v3, 2, 2")
E("v_or_b32 v4, v4, v5")
E("v_xor_b32 v4, v4, v2")
E("v_lshlrev_b32 v4, 4, v4")
E(f"v_lshl_add_u32 v{VKB}, v3, 8, v4")
E(f"v_bfe_u32 v4, v{VLANE}, 4, 1")
E(f"v_bfe_u32 v5, v{VLANE}, 2, 2")
E(f"v_and_b32 v6, 3, v{VLANE}")
E("v_lshrrev_b32 v7, 1, v6")
E("v_lshl_add_u32 v7, v4, 1, v7")
E("v_xor_b32 v7, v7, v2")
E("v_lshl_or_b32 v7, v5, 2, v7")
E("v_lshlrev_b32 v7, 4, v7")
E("v_and_b32 v6, 1, v6")
E("v_lshl_add_u32 v7, v6, 3, v7")
E("v_lshl_add_u32 v8, v2, 2, v5")
E(f"v_lshl_add_u32 v{VVB}, v8, 8, v7")
E(f"v_lshrrev_b32 v4, 4, v{VLANE}")
E(f"v_and_b32 v5, 15, v{VLANE}")
E("v_lshlrev_b32 v6, 2, v4")
E("v_xor_b32 v5, v5, v6")
E("v_lshlrev_b32 v5, 4, v5")
E(f"v_lshl_add_u32 v{VDMA}, v4, 8, v5")
for ii in range(1, 4):
    E(f"v_xor_b32 v{VDMA+ii}, {ii<<4}, v{VDMA}")
E(f"s_lshl_b32 s44, s{S_W}, 6")
E("v_lshlrev_b32 v4, 3, v2")
E("v_lshl_add_u32 v4, v3, 8, v4")
E(f"v_add_u32 v{VOST}, s44, v4")
E(f"s_mov_b32 s46, s39")
def issue_tile(n):
    E(f"s_mov_b32 s{S_SOFF}, {(n//2)*GS}")
    E(f"s_mov_b32 s{S_SOFF2}, {(n//2)*GS+4096}")
    for o in dma_tile(16 if n % 2 == 0 else 20, 46): E(o)
    E("s_add_u32 s46, s46, 8192")
issue_tile(0)
E("v_lshlrev_b32 v4, 4, v2")
E("v_lshl_add_u32 v4, v3, 8, v4")
for qb in range(3):
    E(f"v_add_u32 v5, {qb*8192}, v4")
    for t in range(8):
        k, b = Qreg(qb, t)
        E(f"buffer_load_dwordx4 {rr(k,b,4)}, v5, s[12:15], 0 offen offset:{32*t}")
for n in range(1, 5): issue_tile(n)
for qb in range(3):
    E(f"v_mov_b32 v{VM+qb}, 0xff800000")
    E(f"v_mov_b32 v{VTHR+qb}, 0xff800000")
    E(f"v_mov_b32 v{VL+qb}, 0")
for i in range(24): E(f"v_mov_b32 v{VP+i}, 0")
for i in range(32): E(f"v_mov_b32 v{VV+i}, 0")
for i in range(192): E(f"v_accvgpr_write_b32 a{i}, 0")
E("s_waitcnt vmcnt(32)")
kpre, kper = k_reads()
for o in kpre: E(o)
for t in range(8):
    for o in kper[t]: E(o)
E(f"s_mov_b32 s{S_KSLOT}, s{S_RD}")
for o in advance_rd(): E(o)
E("s_waitcnt lgkmcnt(0)")
E(f"s_mov_b32 s{S_SOFF}, {2*GS}")
E(f"s_mov_b32 s{S_SOFF2}, {2*GS+4096}")
for o in dma_tile(20, S_KSLOT): E(o)
for o in qk_mfmas(0): E(o)
E("s_nop 15")
E(f"s_mov_b32 s{S_J}, 0")
E(f"s_mov_b32 s{S_SOFF}, {3*GS}")
E(f"s_mov_b32 s{S_SOFF2}, {3*GS+4096}")
if PROF:
    E("s_memtime s[52:53]")
L("LOOP")
for qb in range(3):
    emit_slot(qb, f"{qb}")
E(f"s_add_u32 s{S_SOFF}, s{S_SOFF}, {GS}")
E(f"s_add_u32 s{S_SOFF2}, s{S_SOFF2}, {GS}")
E(f"s_add_u32 s{S_J}, s{S_J}, 1")
E(f"s_cmp_lt_u32 s{S_J}, {NBLK}")
E("s_cbranch_scc1 LOOP")
if PROF:
    E("s_memtime s[54:55]")
for o in pv_mfmas(2): E(o)
E("s_nop 15"); E("s_nop 7")
for qb in range(3):
    E(f"v_mov_b32 v{VT}, v{VL+qb}")
    E("s_nop 1")
    E(f"v_permlane32_swap_b32 v{VL+qb}, v{VT}")
    E(f"v_add_f32 v{VL+qb}, v{VL+qb}, v{VT}")
E("s_waitcnt vmcnt(0) lgkmcnt(0)")
E("s_barrier")
E(f"s_mul_i32 s44, s{S_W}, 768")
E(f"v_and_b32 v3, 31, v{VLANE}")
E("v_lshlrev_b32 v4, 3, v3")
E("v_add_u32 v5, s44, v4")
for qb in range(3):
    E(f"v_mov_b32 v{VT}, v{VM+qb}")
    E(f"v_mov_b32 v{VT+1}, v{VL+qb}")
    E(f"ds_write_b64 v5, v[{VT}:{VT+1}] offset:{qb*256}")
E("s_waitcnt lgkmcnt(0)")
E("s_barrier")
for qb in range(3):
    for w in range(4):
        r = 16 + (qb*4+w)*2
        E(f"ds_read_b64 v[{r}:{r+1}], v4 offset:{w*768+qb*256}")
E("s_waitcnt lgkmcnt(0)")
for qb in range(3):
    r = 16 + qb*8
    E(f"v_max_f32 v{VT}, v{r}, v{r+2}")
    E(f"v_max3_f32 v{VT}, v{VT}, v{r+4}, v{r+6}")
    for w in range(4):
        E(f"v_sub_f32 v{r+2*w}, v{r+2*w}, v{VT}")
        E(f"v_exp_f32 v{r+2*w}, v{r+2*w}")
    E("s_nop 0")
    E(f"v_mul_f32 v{VT+1}, v{r}, v{r+1}")
    for w in range(1, 4):
        E(f"v_fmac_f32 v{VT+1}, v{r+2*w}, v{r+2*w+1}")
    E(f"v_rcp_f32 v{VT+1}, v{VT+1}")
    E(f"v_sub_f32 v{VT+2}, v{VM+qb}, v{VT}")
    E(f"v_exp_f32 v{VT+2}, v{VT+2}")
    E("s_nop 0")
    E(f"v_mul_f32 v{VM+qb}, v{VT+1}, v{VT+2}")
E(f"v_lshlrev_b32 v6, 4, v{VLANE}")
for w in range(4):
    if w < 3:
        E(f"s_cmp_eq_u32 s{S_W}, {w}")
        E(f"s_cbranch_scc1 EPI_{w}")
    else:
        E(f"s_branch EPI_{w}")
BASE = 4096
def region(dw, si, qb, r4):
    return BASE + (((dw*3+si)*3+qb)*4 + r4)*1024
for w in range(4):
    L(f"EPI_{w}")
    for dw in range(4):
        if dw == w: continue
        si = w if w < dw else w-1
        for qb in range(3):
            for r4 in range(4):
                t = 64 + ((qb*4+r4) % 4)*4
                for i in range(4):
                    a = O(qb, dw) + r4*4 + i
                    E(f"v_accvgpr_read_b32 v{t+i}, a{a}")
                for i in range(4):
                    E(f"v_mul_f32 v{t+i}, v{t+i}, v{VM+qb}")
                addr = region(dw, si, qb, r4)
                if addr < 65536-1024:
                    E(f"ds_write_b128 v6, v[{t}:{t+3}] offset:{addr}")
                else:
                    E(f"v_add_u32 v7, {addr}, v6")
                    E(f"ds_write_b128 v7, v[{t}:{t+3}]")
    for qb in range(3):
        for r in range(16):
            E(f"v_accvgpr_read_b32 v{16+qb*16+r}, a{O(qb,w)+r}")
            E(f"v_mul_f32 v{16+qb*16+r}, v{16+qb*16+r}, v{VM+qb}")
    E("s_waitcnt lgkmcnt(0)")
    E("s_barrier")
    for si in range(3):
        for qb in range(3):
            for r4 in range(4):
                t = 64 + (qb*4+r4)*4
                addr = region(w, si, qb, r4)
                if addr < 65536-1024:
                    E(f"ds_read_b128 v[{t}:{t+3}], v6 offset:{addr}")
                else:
                    E(f"v_add_u32 v7, {addr}, v6")
                    E(f"ds_read_b128 v[{t}:{t+3}], v7")
        E("s_waitcnt lgkmcnt(0)")
        for i in range(48):
            E(f"v_add_f32 v{16+i}, v{16+i}, v{64+i}")
    for qb in range(3):
        for r4 in range(4):
            b = 16 + qb*16 + r4*4
            E(f"v_cvt_pk_bf16_f32 v{b}, v{b}, v{b+1}")
            E(f"v_cvt_pk_bf16_f32 v{b+1}, v{b+2}, v{b+3}")
            E(f"buffer_store_dwordx2 v[{b}:{b+1}], v{VOST}, s[24:27], 0 offen offset:{qb*8192+r4*16}" if qb*8192+r4*16 < 4096 else
              f"v_add_u32 v7, {qb*8192}, v{VOST}\n    buffer_store_dwordx2 v[{b}:{b+1}], v7, s[24:27], 0 offen offset:{r4*16}")
    if PROF:
        E("s_memtime s[56:57]")
        E("s_memrealtime s[66:67]")
        E("s_waitcnt lgkmcnt(0)")
        E("s_mov_b32 s62, 256"); E("s_mov_b32 s63, 0x00020000")
        E("s_sub_u32 s52, s52, s50"); E("s_sub_u32 s54, s54, s50"); E("s_sub_u32 s56, s56, s50")
        E("v_mov_b32 v2, s52"); E("v_mov_b32 v3, s54"); E("v_mov_b32 v4, s56"); E("s_sub_u32 s66, s66, s64"); E("v_mov_b32 v5, s66")
        E(f"s_lshl_b32 s44, s{S_W}, 4")
        E(f"s_cmp_lg_u32 s2, {PROFWG}")
        E(f"s_cbranch_scc1 SKIP_{w}")
        E("v_mov_b32 v6, s44")
        E("buffer_store_dwordx4 v[2:5], v6, s[60:63], 0 offen")
        out.append(f"SKIP_{w}:")
    E("s_endpgm")
L("L_END")
E("s_endpgm")
for qb in range(3):
    if not NOCOMP: rare_path(qb, f"{qb}")
out.append('.section .rodata,"a"')
out.append('.p2align 6')
out.append('.amdhsa_kernel standalone__gqa_softmax__near_ridge_kernel')
out.append(f'  .amdhsa_next_free_vgpr 512')
out.append('  .amdhsa_next_free_sgpr 72')
out.append('  .amdhsa_accum_offset 256')
out.append('  .amdhsa_group_segment_fixed_size 0')
out.append('  .amdhsa_kernarg_size 48')
out.append('  .amdhsa_user_sgpr_count 2')
out.append('  .amdhsa_user_sgpr_kernarg_segment_ptr 1')
out.append('  .amdhsa_system_sgpr_workgroup_id_x 1')
out.append('.end_amdhsa_kernel')
open(sys.argv[1] if len(sys.argv) > 1 else 'standalone__gqa_softmax__near_ridge.s', 'w').write("\n".join(out) + "\n")
```

```python
import sys

out = []
import os
PROF = int(os.environ.get('PROF','0'))
PROFWG = int(os.environ.get('PROFWG','0'))
NODMA = int(os.environ.get('NODMA','0'))
ILV = int(os.environ.get('ILV','0'))
HALF = int(os.environ.get('HALF','0'))
GS = 32768 if ILV else 8192
NBLK = 8 if HALF else 16
NT = os.environ.get('NT','')
if NT: NT += ' '
NOCOMP = int(os.environ.get('NOCOMP','0'))
def E(s): out.append("    " + s)
def L(s): out.append(s + ":")

def O(qb, db):
    b = (qb*4+db)*16
    return b
def Qreg(qb, t):
    if qb < 2:
        return ('a', 192 + (qb*8+t)*4)
    return ('v', VQ2 + t*4)
def rr(kind, base, n):
    return f"{kind}[{base}:{base+n-1}]"

VS = 16
VP = 64
VK = 88
VV = 120
VQ2 = 152
VM = 184
VTHR = 187
VL = 190
VT = 194
VKB = 202
VVB = 203
VDMA = 204
VAD = 208
VLANE = 216
VOST = 217
NVGPR = 224

S_C = 29; S_INVC = 30; S_J = 31; S_RD = 32; S_VSLOT = 35; S_KSLOT = 36; S_SOFF = 34; S_SOFF2 = 37
S_W = 28

def S(qb, i): return VS + qb*16 + i
def P(qb, i): return VP + qb*8 + i
def Kf(t): return VK + t*4
def Vf(db, s): return VV + (db*2+s)*4

def dma_tile(srd, s_slot):
    ops = []
    if NODMA and s_slot != 46: return ops
    ops.append(f"s_mov_b32 m0, s{s_slot}")
    ops.append("s_nop 0")
    for i in range(4):
        ops.append(f"buffer_load_dwordx4 v{VDMA+i}, s[{srd}:{srd+3}], s{S_SOFF} offen offset:{i*1024} {NT}lds")
    ops.append(f"s_add_u32 m0, s{s_slot}, 4096")
    ops.append("s_nop 0")
    for i in range(4):
        ops.append(f"buffer_load_dwordx4 v{VDMA+i}, s[{srd}:{srd+3}], s{S_SOFF2} offen offset:{i*1024} {NT}lds")
    return ops

def advance_rd():
    return [f"s_add_u32 s{S_RD}, s{S_RD}, 8192",
            f"s_cmp_ge_u32 s{S_RD}, s38",
            f"s_cselect_b32 s{S_RD}, s39, s{S_RD}"]

def softmax_ops(qb, lbl):
    s = lambda i: f"v{S(qb,i)}"
    t0, t1, t2 = VT, VT+1, VT+2
    head = []
    head.append(f"v_max3_f32 v{t0}, {s(0)}, {s(1)}, {s(2)}")
    head.append(f"v_max3_f32 v{t1}, {s(3)}, {s(4)}, {s(5)}")
    head.append(f"v_max3_f32 v{t0}, v{t0}, {s(6)}, {s(7)}")
    head.append(f"v_max3_f32 v{t1}, v{t1}, {s(8)}, {s(9)}")
    head.append(f"v_max3_f32 v{t0}, v{t0}, {s(10)}, {s(11)}")
    head.append(f"v_max3_f32 v{t1}, v{t1}, {s(12)}, {s(13)}")
    head.append(f"v_max3_f32 v{t0}, v{t0}, {s(14)}, {s(15)}")
    head.append(f"v_max_f32 v{t0}, v{t0}, v{t1}")
    head.append(f"v_mov_b32 v{t1}, v{t0}")
    head.append("s_nop 1")
    head.append(f"v_permlane32_swap_b32 v{t0}, v{t1}")
    head.append(f"v_max_f32 v{t0}, v{t0}, v{t1}")
    head.append(f"v_cmp_gt_f32 vcc, v{t0}, v{VTHR+qb}")
    head.append(f"s_cbranch_vccnz RARE_{lbl}\nBACK_{lbl}:")
    tail = []
    m = f"v{VM+qb}"
    l = f"v{VL+qb}"
    seq = []
    for i in range(16 + 4):
        if i < 16:
            seq.append(f"v_fma_f32 {s(i)}, {s(i)}, s{S_C}, -{m}")
        if 0 <= i-1 < 16:
            seq.append(f"v_exp_f32 {s(i-1)}, {s(i-1)}")
        if 0 <= i-3 < 16:
            seq.append(f"v_add_f32 {l}, {l}, {s(i-3)}")
            if (i-3) % 2 == 1:
                k = (i-3)//2
                seq.append(f"v_cvt_pk_bf16_f32 v{P(qb,k)}, {s(2*k)}, {s(2*k+1)}")
    tail = seq
    return head, tail

def rare_path(qb, lbl):
    t0, t1, t2, t3 = VT, VT+1, VT+2, VT+3
    L(f"RARE_{lbl}")
    m = f"v{VM+qb}"
    E(f"v_mul_f32 v{t1}, s{S_C}, v{t0}")
    E(f"v_max_f32 v{t1}, v{t1}, {m}")
    E(f"v_sub_f32 v{t2}, {m}, v{t1}")
    E(f"v_exp_f32 v{t2}, v{t2}")
    E(f"v_mov_b32 {m}, v{t1}")
    E(f"v_add_f32 v{t1}, 0x41000000, v{t1}")
    E(f"v_mul_f32 v{VTHR+qb}, s{S_INVC}, v{t1}")
    E(f"v_mul_f32 v{VL+qb}, v{VL+qb}, v{t2}")
    for db in range(4):
        for r in range(16):
            a = O(qb, db) + r
            tt = VT + 3 + (r % 4)
            E(f"v_accvgpr_read_b32 v{tt}, a{a}")
            E(f"v_mul_f32 v{tt}, v{tt}, v{t2}")
            E(f"v_accvgpr_write_b32 a{a}, v{tt}")
    E(f"s_branch BACK_{lbl}")

def qk_mfmas(qb):
    ops = []
    for t in range(8):
        k, b = Qreg(qb, t)
        c = "0" if t == 0 else f"v[{S(qb,0)}:{S(qb,15)}]"
        ops.append(f"v_mfma_f32_32x32x16_bf16 v[{S(qb,0)}:{S(qb,15)}], v[{Kf(t)}:{Kf(t)+3}], {rr(k,b,4)}, {c}")
    return ops

def pv_mfmas(qb):
    ops = []
    for s in range(2):
        for db in range(4):
            o = O(qb, db)
            ops.append(f"v_mfma_f32_32x32x16_bf16 a[{o}:{o+15}], v[{Vf(db,s)}:{Vf(db,s)+3}], v[{P(qb,4*s)}:{P(qb,4*s)+3}], a[{o}:{o+15}]")
    return ops

def k_reads():
    pre = [f"v_add_u32 v{VAD}, s{S_RD}, v{VKB}"]
    per = []
    for t in range(8):
        a = VAD + 1 + (t % 4)
        if t == 0:
            per.append([f"ds_read_b128 v[{Kf(t)}:{Kf(t)+3}], v{VAD}"])
        else:
            per.append([f"v_xor_b32 v{a}, {t<<5}, v{VAD}", f"ds_read_b128 v[{Kf(t)}:{Kf(t)+3}], v{a}"])
    return pre, per

def v_reads():
    pre = [f"v_add_u32 v{VAD}, s{S_RD}, v{VVB}"]
    per = {}
    for s in range(2):
        for db in range(4):
            lst = []
            for sec in range(2):
                x = (db << 6) ^ (sec << 5)
                a = VAD + 1 + ((db*2+sec) % 4)
                off = sec*2048 + s*4096
                r = Vf(db, s) + 2*sec
                if x == 0:
                    lst.append(f"ds_read_b64_tr_b16 v[{r}:{r+1}], v{VAD} offset:{off}")
                else:
                    lst.append(f"v_xor_b32 v{a}, {x}, v{VAD}")
                    lst.append(f"ds_read_b64_tr_b16 v[{r}:{r+1}], v{a} offset:{off}")
            per[(s, db)] = lst
    return pre, per

def cost(op):
    if op.startswith('v_exp') or op.startswith('v_rcp'): return 8
    if op.startswith('v_'): return 4
    if op.startswith('ds_'): return 4
    if op.startswith('buffer_load'): return 12
    if op.startswith('s_nop'): return 4
    return 1

def emit_slot(qb, lbl):
    nq = (qb+1) % 3
    pq = (qb+2) % 3
    qk = qk_mfmas(nq)
    pv = pv_mfmas(pq)
    head, tail = softmax_ops(qb, lbl)
    aux = [[] for _ in range(16)]
    pre = [[] for _ in range(16)]
    if qb == 0:
        vpre, vper = v_reads()
        pre[8] += ["s_waitcnt vmcnt(32)"] + vpre
        idx = 8
        for s_ in range(2):
            for db in range(4):
                aux[idx] += vper[(s_, db)]
                idx += 1
        aux[15] += [f"s_mov_b32 s{S_VSLOT}, s{S_RD}"] + advance_rd()
    elif qb == 1:
        kpre, kper = k_reads()
        pre[0] += ["s_waitcnt vmcnt(24)"] + kpre
        for t in range(8):
            aux[t] += kper[t]
        aux[7] += [f"s_mov_b32 s{S_KSLOT}, s{S_RD}"] + advance_rd()
        pre[8] += ["s_waitcnt lgkmcnt(8)"]
        d = dma_tile(16, S_VSLOT)
        if d:
            aux[8] += d[0:3]; aux[9] += d[3:4]; aux[10] += d[4:5]; aux[11] += d[5:6]
            aux[12] += d[6:9]; aux[13] += d[9:10]; aux[14] += d[10:11]; aux[15] += d[11:12]
    else:
        pre[0] += ["s_waitcnt lgkmcnt(0)"]
        d = dma_tile(20, S_KSLOT)
        if d:
            aux[0] += d[0:3]; aux[1] += d[3:4]; aux[2] += d[4:5]; aux[3] += d[5:6]
            aux[4] += d[6:9]; aux[5] += d[9:10]; aux[6] += d[10:11]; aux[7] += d[11:12]
    mf = qk + pv
    valu = head + tail
    total = sum(cost(v) for v in valu) + sum(cost(o) for l_ in aux for o in l_) + sum(cost(o) for l_ in pre for o in l_)
    pos = 0
    acc = 0
    for i in range(16):
        for o in pre[i]:
            E(o); acc += cost(o)
        if not NOCOMP: E(mf[i])
        for o in aux[i]:
            E(o); acc += cost(o)
        if NOCOMP: continue
        target = total * (i+1) / 16.0
        while pos < len(valu) and (acc + cost(valu[pos])/2 <= target or i == 15):
            E(valu[pos]); acc += cost(valu[pos]); pos += 1

hdr = open('standalone__gqa_softmax__near_ridge.s.ref').read().split('\n')
for line in hdr:
    if line.startswith('; @launch'):
        out.append("; @launch grid=(256,1,1) block=(256,1,1) lds=163840")
        continue
    if line.startswith(';'):
        out.append(line); continue
    break
out.append('.amdgcn_target "amdgcn-amd-amdhsa--gfx950"')
out.append('.text')
out.append('.globl standalone__gqa_softmax__near_ridge_kernel')
out.append('.p2align 8')
out.append('.type standalone__gqa_softmax__near_ridge_kernel,@function')
L("standalone__gqa_softmax__near_ridge_kernel")
E("s_cmp_ge_u32 s2, 256")
E("s_cbranch_scc1 L_END")
E("s_load_dwordx4 s[4:7], s[0:1], 0")
E("s_load_dwordx4 s[8:11], s[0:1], 16")
if PROF:
    E("s_load_dwordx2 s[60:61], s[0:1], 32")
    E("s_memtime s[50:51]")
    E("s_memrealtime s[64:65]")
E(f"v_lshrrev_b32 v1, 6, v0")
E("s_nop 0")
E(f"v_readfirstlane_b32 s{S_W}, v1")
E(f"v_and_b32 v{VLANE}, 63, v0")
E("s_and_b32 s40, s2, 7")
E("s_lshr_b32 s41, s2, 3")
E("s_lshr_b32 s42, s41, 1")
E("s_lshl_b32 s42, s42, 3")
E("s_add_u32 s42, s42, s40")
E("s_and_b32 s41, s41, 1")
E("s_lshl_b32 s43, s42, 1")
E("s_add_u32 s43, s43, s41")
E("s_waitcnt lgkmcnt(0)")
E("s_mul_i32 s44, s43, 24576")
E("s_add_u32 s12, s4, s44"); E("s_addc_u32 s13, s5, 0"); E("s_mov_b32 s14, 24576"); E("s_mov_b32 s15, 0x00020000")
E("s_add_u32 s24, s10, s44"); E("s_addc_u32 s25, s11, 0"); E("s_mov_b32 s26, 24576"); E("s_mov_b32 s27, 0x00020000")
E("s_lshl_b32 s44, s42, 19")
E(f"s_lshl_b32 s45, s{S_W}, {13 if ILV else (16 if HALF else 17)}")
if HALF:
    E("s_lshl_b32 s47, s41, 18")
    E("s_add_u32 s45, s45, s47")
E("s_add_u32 s44, s44, s45")
if ILV:
    E(f"s_sub_u32 s47, {524288 if not HALF else 262144}, s45")
    if HALF: E("s_lshl_b32 s47, s%d, 13" % S_W); E("s_sub_u32 s47, 262144, s47")
else:
    E(f"s_mov_b32 s47, {131072 if not HALF else 65536}")
E("s_add_u32 s16, s6, s44"); E("s_addc_u32 s17, s7, 0"); E("s_mov_b32 s18, s47"); E("s_mov_b32 s19, 0x00020000")
E("s_add_u32 s20, s8, s44"); E("s_addc_u32 s21, s9, 0"); E("s_mov_b32 s22, s47"); E("s_mov_b32 s23, 0x00020000")
E(f"s_mul_i32 s39, s{S_W}, 40960")
E("s_add_u32 s38, s39, 40960")
E(f"s_mov_b32 s{S_RD}, s39")
import math
c = (128 ** -0.5) * math.log2(math.e)
import struct
def f2u(x): return struct.unpack('<I', struct.pack('<f', x))[0]
E(f"s_mov_b32 s{S_C}, 0x{f2u(c):08x}")
E(f"s_mov_b32 s{S_INVC}, 0x{f2u(1.0/c):08x}")
E(f"v_lshrrev_b32 v2, 5, v{VLANE}")
E(f"v_and_b32 v3, 31, v{VLANE}")
E("v_and_b32 v4, 3, v3")
E("v_lshlrev_b32 v4, 2, v4")
E("v_bfe_u32 v5, v3, 2, 2")
E("v_or_b32 v4, v4, v5")
E("v_xor_b32 v4, v4, v2")
E("v_lshlrev_b32 v4, 4, v4")
E(f"v_lshl_add_u32 v{VKB}, v3, 8, v4")
E(f"v_bfe_u32 v4, v{VLANE}, 4, 1")
E(f"v_bfe_u32 v5, v{VLANE}, 2, 2")
E(f"v_and_b32 v6, 3, v{VLANE}")
E("v_lshrrev_b32 v7, 1, v6")
E("v_lshl_add_u32 v7, v4, 1, v7")
E("v_xor_b32 v7, v7, v2")
E("v_lshl_or_b32 v7, v5, 2, v7")
E("v_lshlrev_b32 v7, 4, v7")
E("v_and_b32 v6, 1, v6")
E("v_lshl_add_u32 v7, v6, 3, v7")
E("v_lshl_add_u32 v8, v2, 2, v5")
E(f"v_lshl_add_u32 v{VVB}, v8, 8, v7")
E(f"v_lshrrev_b32 v4, 4, v{VLANE}")
E(f"v_and_b32 v5, 15, v{VLANE}")
E("v_lshlrev_b32 v6, 2, v4")
E("v_xor_b32 v5, v5, v6")
E("v_lshlrev_b32 v5, 4, v5")
E(f"v_lshl_add_u32 v{VDMA}, v4, 8, v5")
for ii in range(1, 4):
    E(f"v_xor_b32 v{VDMA+ii}, {ii<<4}, v{VDMA}")
E(f"s_lshl_b32 s44, s{S_W}, 6")
E("v_lshlrev_b32 v4, 3, v2")
E("v_lshl_add_u32 v4, v3, 8, v4")
E(f"v_add_u32 v{VOST}, s44, v4")
E(f"s_mov_b32 s46, s39")
def issue_tile(n):
    E(f"s_mov_b32 s{S_SOFF}, {(n//2)*GS}")
    E(f"s_mov_b32 s{S_SOFF2}, {(n//2)*GS+4096}")
    for o in dma_tile(16 if n % 2 == 0 else 20, 46): E(o)
    E("s_add_u32 s46, s46, 8192")
issue_tile(0)
E("v_lshlrev_b32 v4, 4, v2")
E("v_lshl_add_u32 v4, v3, 8, v4")
for qb in range(3):
    E(f"v_add_u32 v5, {qb*8192}, v4")
    for t in range(8):
        k, b = Qreg(qb, t)
        E(f"buffer_load_dwordx4 {rr(k,b,4)}, v5, s[12:15], 0 offen offset:{32*t}")
for n in range(1, 5): issue_tile(n)
for qb in range(3):
    E(f"v_mov_b32 v{VM+qb}, 0xff800000")
    E(f"v_mov_b32 v{VTHR+qb}, 0xff800000")
    E(f"v_mov_b32 v{VL+qb}, 0")
for i in range(24): E(f"v_mov_b32 v{VP+i}, 0")
for i in range(32): E(f"v_mov_b32 v{VV+i}, 0")
for i in range(192): E(f"v_accvgpr_write_b32 a{i}, 0")
E("s_waitcnt vmcnt(32)")
kpre, kper = k_reads()
for o in kpre: E(o)
for t in range(8):
    for o in kper[t]: E(o)
E(f"s_mov_b32 s{S_KSLOT}, s{S_RD}")
for o in advance_rd(): E(o)
E("s_waitcnt lgkmcnt(0)")
E(f"s_mov_b32 s{S_SOFF}, {2*GS}")
E(f"s_mov_b32 s{S_SOFF2}, {2*GS+4096}")
for o in dma_tile(20, S_KSLOT): E(o)
for o in qk_mfmas(0): E(o)
E("s_nop 15")
E(f"s_mov_b32 s{S_J}, 0")
E(f"s_mov_b32 s{S_SOFF}, {3*GS}")
E(f"s_mov_b32 s{S_SOFF2}, {3*GS+4096}")
if PROF:
    E("s_memtime s[52:53]")
L("LOOP")
for qb in range(3):
    emit_slot(qb, f"{qb}")
E(f"s_add_u32 s{S_SOFF}, s{S_SOFF}, {GS}")
E(f"s_add_u32 s{S_SOFF2}, s{S_SOFF2}, {GS}")
E(f"s_add_u32 s{S_J}, s{S_J}, 1")
E(f"s_cmp_lt_u32 s{S_J}, {NBLK}")
E("s_cbranch_scc1 LOOP")
if PROF:
    E("s_memtime s[54:55]")
for o in pv_mfmas(2): E(o)
E("s_nop 15"); E("s_nop 7")
for qb in range(3):
    E(f"v_mov_b32 v{VT}, v{VL+qb}")
    E("s_nop 1")
    E(f"v_permlane32_swap_b32 v{VL+qb}, v{VT}")
    E(f"v_add_f32 v{VL+qb}, v{VL+qb}, v{VT}")
E("s_waitcnt vmcnt(0) lgkmcnt(0)")
E("s_barrier")
E(f"s_mul_i32 s44, s{S_W}, 768")
E(f"v_and_b32 v3, 31, v{VLANE}")
E("v_lshlrev_b32 v4, 3, v3")
E("v_add_u32 v5, s44, v4")
for qb in range(3):
    E(f"v_mov_b32 v{VT}, v{VM+qb}")
    E(f"v_mov_b32 v{VT+1}, v{VL+qb}")
    E(f"ds_write_b64 v5, v[{VT}:{VT+1}] offset:{qb*256}")
E("s_waitcnt lgkmcnt(0)")
E("s_barrier")
for qb in range(3):
    for w in range(4):
        r = 16 + (qb*4+w)*2
        E(f"ds_read_b64 v[{r}:{r+1}], v4 offset:{w*768+qb*256}")
E("s_waitcnt lgkmcnt(0)")
for qb in range(3):
    r = 16 + qb*8
    E(f"v_max_f32 v{VT}, v{r}, v{r+2}")
    E(f"v_max3_f32 v{VT}, v{VT}, v{r+4}, v{r+6}")
    for w in range(4):
        E(f"v_sub_f32 v{r+2*w}, v{r+2*w}, v{VT}")
        E(f"v_exp_f32 v{r+2*w}, v{r+2*w}")
    E("s_nop 0")
    E(f"v_mul_f32 v{VT+1}, v{r}, v{r+1}")
    for w in range(1, 4):
        E(f"v_fmac_f32 v{VT+1}, v{r+2*w}, v{r+2*w+1}")
    E(f"v_rcp_f32 v{VT+1}, v{VT+1}")
    E(f"v_sub_f32 v{VT+2}, v{VM+qb}, v{VT}")
    E(f"v_exp_f32 v{VT+2}, v{VT+2}")
    E("s_nop 0")
    E(f"v_mul_f32 v{VM+qb}, v{VT+1}, v{VT+2}")
E(f"v_lshlrev_b32 v6, 4, v{VLANE}")
for w in range(4):
    if w < 3:
        E(f"s_cmp_eq_u32 s{S_W}, {w}")
        E(f"s_cbranch_scc1 EPI_{w}")
    else:
        E(f"s_branch EPI_{w}")
BASE = 4096
def region(dw, si, qb, r4):
    return BASE + (((dw*3+si)*3+qb)*4 + r4)*1024
for w in range(4):
    L(f"EPI_{w}")
    for dw in range(4):
        if dw == w: continue
        si = w if w < dw else w-1
        for qb in range(3):
            for r4 in range(4):
                t = 64 + ((qb*4+r4) % 4)*4
                for i in range(4):
                    a = O(qb, dw) + r4*4 + i
                    E(f"v_accvgpr_read_b32 v{t+i}, a{a}")
                for i in range(4):
                    E(f"v_mul_f32 v{t+i}, v{t+i}, v{VM+qb}")
                addr = region(dw, si, qb, r4)
                if addr < 65536-1024:
                    E(f"ds_write_b128 v6, v[{t}:{t+3}] offset:{addr}")
                else:
                    E(f"v_add_u32 v7, {addr}, v6")
                    E(f"ds_write_b128 v7, v[{t}:{t+3}]")
    for qb in range(3):
        for r in range(16):
            E(f"v_accvgpr_read_b32 v{16+qb*16+r}, a{O(qb,w)+r}")
            E(f"v_mul_f32 v{16+qb*16+r}, v{16+qb*16+r}, v{VM+qb}")
    E("s_waitcnt lgkmcnt(0)")
    E("s_barrier")
    for si in range(3):
        for qb in range(3):
            for r4 in range(4):
                t = 64 + (qb*4+r4)*4
                addr = region(w, si, qb, r4)
                if addr < 65536-1024:
                    E(f"ds_read_b128 v[{t}:{t+3}], v6 offset:{addr}")
                else:
                    E(f"v_add_u32 v7, {addr}, v6")
                    E(f"ds_read_b128 v[{t}:{t+3}], v7")
        E("s_waitcnt lgkmcnt(0)")
        for i in range(48):
            E(f"v_add_f32 v{16+i}, v{16+i}, v{64+i}")
    for qb in range(3):
        for r4 in range(4):
            b = 16 + qb*16 + r4*4
            E(f"v_cvt_pk_bf16_f32 v{b}, v{b}, v{b+1}")
            E(f"v_cvt_pk_bf16_f32 v{b+1}, v{b+2}, v{b+3}")
            E(f"buffer_store_dwordx2 v[{b}:{b+1}], v{VOST}, s[24:27], 0 offen offset:{qb*8192+r4*16}" if qb*8192+r4*16 < 4096 else
              f"v_add_u32 v7, {qb*8192}, v{VOST}\n    buffer_store_dwordx2 v[{b}:{b+1}], v7, s[24:27], 0 offen offset:{r4*16}")
    if PROF:
        E("s_memtime s[56:57]")
        E("s_memrealtime s[66:67]")
        E("s_waitcnt lgkmcnt(0)")
        E("s_mov_b32 s62, 256"); E("s_mov_b32 s63, 0x00020000")
        E("s_sub_u32 s52, s52, s50"); E("s_sub_u32 s54, s54, s50"); E("s_sub_u32 s56, s56, s50")
        E("v_mov_b32 v2, s52"); E("v_mov_b32 v3, s54"); E("v_mov_b32 v4, s56"); E("s_sub_u32 s66, s66, s64"); E("v_mov_b32 v5, s66")
        E("s_add_u32 s68, s66, s64")
        E("s_not_b32 s69, s64")
        E("v_mov_b32 v8, s69"); E("v_mov_b32 v9, s68"); E("v_mov_b32 v10, s66"); E("v_mov_b32 v11, s64")
        E("v_mov_b32 v12, 0")
        E("s_mov_b64 exec, 1")
        E("buffer_atomic_umax v8, v12, s[60:63], 0 offen offset:32")
        E("buffer_atomic_umax v9, v12, s[60:63], 0 offen offset:36")
        E("buffer_atomic_umax v10, v12, s[60:63], 0 offen offset:40")
        E("buffer_atomic_umax v11, v12, s[60:63], 0 offen offset:44")
        E("s_mov_b64 exec, -1")
        E(f"s_lshl_b32 s44, s{S_W}, 4")
        E(f"s_cmp_lg_u32 s2, {PROFWG}")
        E(f"s_cbranch_scc1 SKIP_{w}")
        E(f"s_cmp_ge_u32 s{S_W}, 2")
        E(f"s_cbranch_scc1 SKIP_{w}")
        E("v_mov_b32 v6, s44")
        E("buffer_store_dwordx4 v[2:5], v6, s[60:63], 0 offen")
        out.append(f"SKIP_{w}:")
    E("s_endpgm")
L("L_END")
E("s_endpgm")
for qb in range(3):
    if not NOCOMP: rare_path(qb, f"{qb}")
out.append('.section .rodata,"a"')
out.append('.p2align 6')
out.append('.amdhsa_kernel standalone__gqa_softmax__near_ridge_kernel')
out.append(f'  .amdhsa_next_free_vgpr 512')
out.append('  .amdhsa_next_free_sgpr 72')
out.append('  .amdhsa_accum_offset 256')
out.append('  .amdhsa_group_segment_fixed_size 0')
out.append('  .amdhsa_kernarg_size 48')
out.append('  .amdhsa_user_sgpr_count 2')
out.append('  .amdhsa_user_sgpr_kernarg_segment_ptr 1')
out.append('  .amdhsa_system_sgpr_workgroup_id_x 1')
out.append('.end_amdhsa_kernel')
open(sys.argv[1] if len(sys.argv) > 1 else 'standalone__gqa_softmax__near_ridge.s', 'w').write("\n".join(out) + "\n")
```

```python
import sys

out = []
import os
PROF = int(os.environ.get('PROF','0'))
PROFWG = int(os.environ.get('PROFWG','0'))
NODMA = int(os.environ.get('NODMA','0'))
ILV = int(os.environ.get('ILV','0'))
HALF = int(os.environ.get('HALF','0'))
GS = 32768 if ILV else 8192
NBLK = 8 if HALF else 16
NT = os.environ.get('NT','')
if NT: NT += ' '
NOCOMP = int(os.environ.get('NOCOMP','0'))
def E(s): out.append("    " + s)
def L(s): out.append(s + ":")

def O(qb, db):
    b = (qb*4+db)*16
    return b
def Qreg(qb, t):
    if qb < 2:
        return ('a', 192 + (qb*8+t)*4)
    return ('v', VQ2 + t*4)
def rr(kind, base, n):
    return f"{kind}[{base}:{base+n-1}]"

VS = 16
VP = 64
VK = 88
VV = 120
VQ2 = 152
VM = 184
VTHR = 187
VL = 190
VT = 194
VKB = 202
VVB = 203
VDMA = 204
VAD = 208
VLANE = 216
VOST = 217
NVGPR = 224

S_C = 29; S_INVC = 30; S_J = 31; S_RD = 32; S_VSLOT = 35; S_KSLOT = 36; S_SOFF = 34; S_SOFF2 = 37
S_W = 28

def S(qb, i): return VS + qb*16 + i
def P(qb, i): return VP + qb*8 + i
def Kf(t): return VK + t*4
def Vf(db, s): return VV + (db*2+s)*4

def dma_tile(srd, s_slot):
    ops = []
    if NODMA and s_slot != 46: return ops
    ops.append(f"s_mov_b32 m0, s{s_slot}")
    ops.append("s_nop 0")
    for i in range(4):
        ops.append(f"buffer_load_dwordx4 v{VDMA+i}, s[{srd}:{srd+3}], s{S_SOFF} offen offset:{i*1024} {NT}lds")
    ops.append(f"s_add_u32 m0, s{s_slot}, 4096")
    ops.append("s_nop 0")
    for i in range(4):
        ops.append(f"buffer_load_dwordx4 v{VDMA+i}, s[{srd}:{srd+3}], s{S_SOFF2} offen offset:{i*1024} {NT}lds")
    return ops

def advance_rd():
    return [f"s_add_u32 s{S_RD}, s{S_RD}, 8192",
            f"s_cmp_ge_u32 s{S_RD}, s38",
            f"s_cselect_b32 s{S_RD}, s39, s{S_RD}"]

def softmax_ops(qb, lbl):
    s = lambda i: f"v{S(qb,i)}"
    t0, t1, t2 = VT, VT+1, VT+2
    head = []
    head.append(f"v_max3_f32 v{t0}, {s(0)}, {s(1)}, {s(2)}")
    head.append(f"v_max3_f32 v{t1}, {s(3)}, {s(4)}, {s(5)}")
    head.append(f"v_max3_f32 v{t0}, v{t0}, {s(6)}, {s(7)}")
    head.append(f"v_max3_f32 v{t1}, v{t1}, {s(8)}, {s(9)}")
    head.append(f"v_max3_f32 v{t0}, v{t0}, {s(10)}, {s(11)}")
    head.append(f"v_max3_f32 v{t1}, v{t1}, {s(12)}, {s(13)}")
    head.append(f"v_max3_f32 v{t0}, v{t0}, {s(14)}, {s(15)}")
    head.append(f"v_max_f32 v{t0}, v{t0}, v{t1}")
    head.append(f"v_mov_b32 v{t1}, v{t0}")
    head.append("s_nop 1")
    head.append(f"v_permlane32_swap_b32 v{t0}, v{t1}")
    head.append(f"v_max_f32 v{t0}, v{t0}, v{t1}")
    head.append(f"v_cmp_gt_f32 vcc, v{t0}, v{VTHR+qb}")
    head.append(f"s_cbranch_vccnz RARE_{lbl}\nBACK_{lbl}:")
    tail = []
    m = f"v{VM+qb}"
    l = f"v{VL+qb}"
    seq = []
    for i in range(16 + 4):
        if i < 16:
            seq.append(f"v_fma_f32 {s(i)}, {s(i)}, s{S_C}, -{m}")
        if 0 <= i-1 < 16:
            seq.append(f"v_exp_f32 {s(i-1)}, {s(i-1)}")
        if 0 <= i-3 < 16:
            seq.append(f"v_add_f32 {l}, {l}, {s(i-3)}")
            if (i-3) % 2 == 1:
                k = (i-3)//2
                seq.append(f"v_cvt_pk_bf16_f32 v{P(qb,k)}, {s(2*k)}, {s(2*k+1)}")
    tail = seq
    return head, tail

def rare_path(qb, lbl):
    t0, t1, t2, t3 = VT, VT+1, VT+2, VT+3
    L(f"RARE_{lbl}")
    m = f"v{VM+qb}"
    E(f"v_mul_f32 v{t1}, s{S_C}, v{t0}")
    E(f"v_max_f32 v{t1}, v{t1}, {m}")
    E(f"v_sub_f32 v{t2}, {m}, v{t1}")
    E(f"v_exp_f32 v{t2}, v{t2}")
    E(f"v_mov_b32 {m}, v{t1}")
    E(f"v_add_f32 v{t1}, 0x41000000, v{t1}")
    E(f"v_mul_f32 v{VTHR+qb}, s{S_INVC}, v{t1}")
    E(f"v_mul_f32 v{VL+qb}, v{VL+qb}, v{t2}")
    for db in range(4):
        for r in range(16):
            a = O(qb, db) + r
            tt = VT + 3 + (r % 4)
            E(f"v_accvgpr_read_b32 v{tt}, a{a}")
            E(f"v_mul_f32 v{tt}, v{tt}, v{t2}")
            E(f"v_accvgpr_write_b32 a{a}, v{tt}")
    E(f"s_branch BACK_{lbl}")

def qk_mfmas(qb):
    ops = []
    for t in range(8):
        k, b = Qreg(qb, t)
        c = "0" if t == 0 else f"v[{S(qb,0)}:{S(qb,15)}]"
        ops.append(f"v_mfma_f32_32x32x16_bf16 v[{S(qb,0)}:{S(qb,15)}], v[{Kf(t)}:{Kf(t)+3}], {rr(k,b,4)}, {c}")
    return ops

def pv_mfmas(qb):
    ops = []
    for s in range(2):
        for db in range(4):
            o = O(qb, db)
            ops.append(f"v_mfma_f32_32x32x16_bf16 a[{o}:{o+15}], v[{Vf(db,s)}:{Vf(db,s)+3}], v[{P(qb,4*s)}:{P(qb,4*s)+3}], a[{o}:{o+15}]")
    return ops

def k_reads():
    pre = [f"v_add_u32 v{VAD}, s{S_RD}, v{VKB}"]
    per = []
    for t in range(8):
        a = VAD + 1 + (t % 4)
        if t == 0:
            per.append([f"ds_read_b128 v[{Kf(t)}:{Kf(t)+3}], v{VAD}"])
        else:
            per.append([f"v_xor_b32 v{a}, {t<<5}, v{VAD}", f"ds_read_b128 v[{Kf(t)}:{Kf(t)+3}], v{a}"])
    return pre, per

def v_reads():
    pre = [f"v_add_u32 v{VAD}, s{S_RD}, v{VVB}"]
    per = {}
    for s in range(2):
        for db in range(4):
            lst = []
            for sec in range(2):
                x = (db << 6) ^ (sec << 5)
                a = VAD + 1 + ((db*2+sec) % 4)
                off = sec*2048 + s*4096
                r = Vf(db, s) + 2*sec
                if x == 0:
                    lst.append(f"ds_read_b64_tr_b16 v[{r}:{r+1}], v{VAD} offset:{off}")
                else:
                    lst.append(f"v_xor_b32 v{a}, {x}, v{VAD}")
                    lst.append(f"ds_read_b64_tr_b16 v[{r}:{r+1}], v{a} offset:{off}")
            per[(s, db)] = lst
    return pre, per

def cost(op):
    if op.startswith('v_exp') or op.startswith('v_rcp'): return 8
    if op.startswith('v_'): return 4
    if op.startswith('ds_'): return 4
    if op.startswith('buffer_load'): return 12
    if op.startswith('s_nop'): return 4
    return 1

def emit_slot(qb, lbl):
    nq = (qb+1) % 3
    pq = (qb+2) % 3
    qk = qk_mfmas(nq)
    pv = pv_mfmas(pq)
    head, tail = softmax_ops(qb, lbl)
    aux = [[] for _ in range(16)]
    pre = [[] for _ in range(16)]
    if qb == 0:
        vpre, vper = v_reads()
        pre[8] += ["s_waitcnt vmcnt(32)"] + vpre
        idx = 8
        for s_ in range(2):
            for db in range(4):
                aux[idx] += vper[(s_, db)]
                idx += 1
        aux[15] += [f"s_mov_b32 s{S_VSLOT}, s{S_RD}"] + advance_rd()
    elif qb == 1:
        kpre, kper = k_reads()
        pre[0] += ["s_waitcnt vmcnt(24)"] + kpre
        for t in range(8):
            aux[t] += kper[t]
        aux[7] += [f"s_mov_b32 s{S_KSLOT}, s{S_RD}"] + advance_rd()
        pre[8] += ["s_waitcnt lgkmcnt(8)"]
        d = dma_tile(16, S_VSLOT)
        if d:
            aux[8] += d[0:3]; aux[9] += d[3:4]; aux[10] += d[4:5]; aux[11] += d[5:6]
            aux[12] += d[6:9]; aux[13] += d[9:10]; aux[14] += d[10:11]; aux[15] += d[11:12]
    else:
        pre[0] += ["s_waitcnt lgkmcnt(0)"]
        d = dma_tile(20, S_KSLOT)
        if d:
            aux[0] += d[0:3]; aux[1] += d[3:4]; aux[2] += d[4:5]; aux[3] += d[5:6]
            aux[4] += d[6:9]; aux[5] += d[9:10]; aux[6] += d[10:11]; aux[7] += d[11:12]
    mf = qk + pv
    valu = head + tail
    total = sum(cost(v) for v in valu) + sum(cost(o) for l_ in aux for o in l_) + sum(cost(o) for l_ in pre for o in l_)
    pos = 0
    acc = 0
    for i in range(16):
        for o in pre[i]:
            E(o); acc += cost(o)
        if not NOCOMP: E(mf[i])
        for o in aux[i]:
            E(o); acc += cost(o)
        if NOCOMP: continue
        target = total * (i+1) / 16.0
        while pos < len(valu) and (acc + cost(valu[pos])/2 <= target or i == 15):
            E(valu[pos]); acc += cost(valu[pos]); pos += 1

hdr = open('standalone__gqa_softmax__near_ridge.s.ref').read().split('\n')
for line in hdr:
    if line.startswith('; @launch'):
        out.append("; @launch grid=(256,1,1) block=(256,1,1) lds=163840")
        continue
    if line.startswith(';'):
        out.append(line); continue
    break
out.append('.amdgcn_target "amdgcn-amd-amdhsa--gfx950"')
out.append('.text')
out.append('.globl standalone__gqa_softmax__near_ridge_kernel')
out.append('.p2align 8')
out.append('.type standalone__gqa_softmax__near_ridge_kernel,@function')
L("standalone__gqa_softmax__near_ridge_kernel")
E("s_cmp_ge_u32 s2, 256")
E("s_cbranch_scc1 L_END")
E("s_load_dwordx4 s[4:7], s[0:1], 0")
E("s_load_dwordx4 s[8:11], s[0:1], 16")
if PROF:
    E("s_load_dwordx2 s[60:61], s[0:1], 32")
    E("s_memtime s[50:51]")
    E("s_memrealtime s[64:65]")
E(f"v_lshrrev_b32 v1, 6, v0")
E("s_nop 0")
E(f"v_readfirstlane_b32 s{S_W}, v1")
E(f"v_and_b32 v{VLANE}, 63, v0")
E("s_and_b32 s40, s2, 7")
E("s_lshr_b32 s41, s2, 3")
E("s_lshr_b32 s42, s41, 1")
E("s_lshl_b32 s42, s42, 3")
E("s_add_u32 s42, s42, s40")
E("s_and_b32 s41, s41, 1")
E("s_lshl_b32 s43, s42, 1")
E("s_add_u32 s43, s43, s41")
E("s_waitcnt lgkmcnt(0)")
E("s_mul_i32 s44, s43, 24576")
E("s_add_u32 s12, s4, s44"); E("s_addc_u32 s13, s5, 0"); E("s_mov_b32 s14, 24576"); E("s_mov_b32 s15, 0x00020000")
E("s_add_u32 s24, s10, s44"); E("s_addc_u32 s25, s11, 0"); E("s_mov_b32 s26, 24576"); E("s_mov_b32 s27, 0x00020000")
E("s_lshl_b32 s44, s42, 19")
E(f"s_lshl_b32 s45, s{S_W}, {13 if ILV else (16 if HALF else 17)}")
if HALF:
    E("s_lshl_b32 s47, s41, 18")
    E("s_add_u32 s45, s45, s47")
E("s_add_u32 s44, s44, s45")
if ILV:
    E(f"s_sub_u32 s47, {524288 if not HALF else 262144}, s45")
    if HALF: E("s_lshl_b32 s47, s%d, 13" % S_W); E("s_sub_u32 s47, 262144, s47")
else:
    E(f"s_mov_b32 s47, {131072 if not HALF else 65536}")
E("s_add_u32 s16, s6, s44"); E("s_addc_u32 s17, s7, 0"); E("s_mov_b32 s18, s47"); E("s_mov_b32 s19, 0x00020000")
E("s_add_u32 s20, s8, s44"); E("s_addc_u32 s21, s9, 0"); E("s_mov_b32 s22, s47"); E("s_mov_b32 s23, 0x00020000")
E(f"s_mul_i32 s39, s{S_W}, 40960")
E("s_add_u32 s38, s39, 40960")
E(f"s_mov_b32 s{S_RD}, s39")
import math
c = (128 ** -0.5) * math.log2(math.e)
import struct
def f2u(x): return struct.unpack('<I', struct.pack('<f', x))[0]
E(f"s_mov_b32 s{S_C}, 0x{f2u(c):08x}")
E(f"s_mov_b32 s{S_INVC}, 0x{f2u(1.0/c):08x}")
E(f"v_lshrrev_b32 v2, 5, v{VLANE}")
E(f"v_and_b32 v3, 31, v{VLANE}")
E("v_and_b32 v4, 3, v3")
E("v_lshlrev_b32 v4, 2, v4")
E("v_bfe_u32 v5, v3, 2, 2")
E("v_or_b32 v4, v4, v5")
E("v_xor_b32 v4, v4, v2")
E("v_lshlrev_b32 v4, 4, v4")
E(f"v_lshl_add_u32 v{VKB}, v3, 8, v4")
E(f"v_bfe_u32 v4, v{VLANE}, 4, 1")
E(f"v_bfe_u32 v5, v{VLANE}, 2, 2")
E(f"v_and_b32 v6, 3, v{VLANE}")
E("v_lshrrev_b32 v7, 1, v6")
E("v_lshl_add_u32 v7, v4, 1, v7")
E("v_xor_b32 v7, v7, v2")
E("v_lshl_or_b32 v7, v5, 2, v7")
E("v_lshlrev_b32 v7, 4, v7")
E("v_and_b32 v6, 1, v6")
E("v_lshl_add_u32 v7, v6, 3, v7")
E("v_lshl_add_u32 v8, v2, 2, v5")
E(f"v_lshl_add_u32 v{VVB}, v8, 8, v7")
E(f"v_lshrrev_b32 v4, 4, v{VLANE}")
E(f"v_and_b32 v5, 15, v{VLANE}")
E("v_lshlrev_b32 v6, 2, v4")
E("v_xor_b32 v5, v5, v6")
E("v_lshlrev_b32 v5, 4, v5")
E(f"v_lshl_add_u32 v{VDMA}, v4, 8, v5")
for ii in range(1, 4):
    E(f"v_xor_b32 v{VDMA+ii}, {ii<<4}, v{VDMA}")
E(f"s_lshl_b32 s44, s{S_W}, 6")
E("v_lshlrev_b32 v4, 3, v2")
E("v_lshl_add_u32 v4, v3, 8, v4")
E(f"v_add_u32 v{VOST}, s44, v4")
E(f"s_mov_b32 s46, s39")
def issue_tile(n):
    E(f"s_mov_b32 s{S_SOFF}, {(n//2)*GS}")
    E(f"s_mov_b32 s{S_SOFF2}, {(n//2)*GS+4096}")
    for o in dma_tile(16 if n % 2 == 0 else 20, 46): E(o)
    E("s_add_u32 s46, s46, 8192")
issue_tile(0)
E("v_lshlrev_b32 v4, 4, v2")
E("v_lshl_add_u32 v4, v3, 8, v4")
for qb in range(3):
    E(f"v_add_u32 v5, {qb*8192}, v4")
    for t in range(8):
        k, b = Qreg(qb, t)
        E(f"buffer_load_dwordx4 {rr(k,b,4)}, v5, s[12:15], 0 offen offset:{32*t}")
for n in range(1, 5): issue_tile(n)
for qb in range(3):
    E(f"v_mov_b32 v{VM+qb}, 0xff800000")
    E(f"v_mov_b32 v{VTHR+qb}, 0xff800000")
    E(f"v_mov_b32 v{VL+qb}, 0")
for i in range(24): E(f"v_mov_b32 v{VP+i}, 0")
for i in range(32): E(f"v_mov_b32 v{VV+i}, 0")
for i in range(192): E(f"v_accvgpr_write_b32 a{i}, 0")
E("s_waitcnt vmcnt(32)")
kpre, kper = k_reads()
for o in kpre: E(o)
for t in range(8):
    for o in kper[t]: E(o)
E(f"s_mov_b32 s{S_KSLOT}, s{S_RD}")
for o in advance_rd(): E(o)
E("s_waitcnt lgkmcnt(0)")
E(f"s_mov_b32 s{S_SOFF}, {2*GS}")
E(f"s_mov_b32 s{S_SOFF2}, {2*GS+4096}")
for o in dma_tile(20, S_KSLOT): E(o)
for o in qk_mfmas(0): E(o)
E("s_nop 15")
E(f"s_mov_b32 s{S_J}, 0")
E(f"s_mov_b32 s{S_SOFF}, {3*GS}")
E(f"s_mov_b32 s{S_SOFF2}, {3*GS+4096}")
if PROF:
    E("s_memtime s[52:53]")
L("LOOP")
for qb in range(3):
    emit_slot(qb, f"{qb}")
E(f"s_add_u32 s{S_SOFF}, s{S_SOFF}, {GS}")
E(f"s_add_u32 s{S_SOFF2}, s{S_SOFF2}, {GS}")
E(f"s_add_u32 s{S_J}, s{S_J}, 1")
E(f"s_cmp_lt_u32 s{S_J}, {NBLK}")
E("s_cbranch_scc1 LOOP")
if PROF:
    E("s_memtime s[54:55]")
for o in pv_mfmas(2): E(o)
E("s_nop 15"); E("s_nop 7")
for qb in range(3):
    E(f"v_mov_b32 v{VT}, v{VL+qb}")
    E("s_nop 1")
    E(f"v_permlane32_swap_b32 v{VL+qb}, v{VT}")
    E(f"v_add_f32 v{VL+qb}, v{VL+qb}, v{VT}")
E("s_waitcnt vmcnt(0) lgkmcnt(0)")
E("s_barrier")
E(f"s_mul_i32 s44, s{S_W}, 768")
E(f"v_and_b32 v3, 31, v{VLANE}")
E("v_lshlrev_b32 v4, 3, v3")
E("v_add_u32 v5, s44, v4")
for qb in range(3):
    E(f"v_mov_b32 v{VT}, v{VM+qb}")
    E(f"v_mov_b32 v{VT+1}, v{VL+qb}")
    E(f"ds_write_b64 v5, v[{VT}:{VT+1}] offset:{qb*256}")
E("s_waitcnt lgkmcnt(0)")
E("s_barrier")
for qb in range(3):
    for w in range(4):
        r = 16 + (qb*4+w)*2
        E(f"ds_read_b64 v[{r}:{r+1}], v4 offset:{w*768+qb*256}")
E("s_waitcnt lgkmcnt(0)")
for qb in range(3):
    r = 16 + qb*8
    E(f"v_max_f32 v{VT}, v{r}, v{r+2}")
    E(f"v_max3_f32 v{VT}, v{VT}, v{r+4}, v{r+6}")
    for w in range(4):
        E(f"v_sub_f32 v{r+2*w}, v{r+2*w}, v{VT}")
        E(f"v_exp_f32 v{r+2*w}, v{r+2*w}")
    E("s_nop 0")
    E(f"v_mul_f32 v{VT+1}, v{r}, v{r+1}")
    for w in range(1, 4):
        E(f"v_fmac_f32 v{VT+1}, v{r+2*w}, v{r+2*w+1}")
    E(f"v_rcp_f32 v{VT+1}, v{VT+1}")
    E(f"v_sub_f32 v{VT+2}, v{VM+qb}, v{VT}")
    E(f"v_exp_f32 v{VT+2}, v{VT+2}")
    E("s_nop 0")
    E(f"v_mul_f32 v{VM+qb}, v{VT+1}, v{VT+2}")
E(f"v_lshlrev_b32 v6, 4, v{VLANE}")
for w in range(4):
    if w < 3:
        E(f"s_cmp_eq_u32 s{S_W}, {w}")
        E(f"s_cbranch_scc1 EPI_{w}")
    else:
        E(f"s_branch EPI_{w}")
BASE = 4096
def region(dw, si, qb, r4):
    return BASE + (((dw*3+si)*3+qb)*4 + r4)*1024
for w in range(4):
    L(f"EPI_{w}")
    for dw in range(4):
        if dw == w: continue
        si = w if w < dw else w-1
        for qb in range(3):
            for r4 in range(4):
                t = 64 + ((qb*4+r4) % 4)*4
                for i in range(4):
                    a = O(qb, dw) + r4*4 + i
                    E(f"v_accvgpr_read_b32 v{t+i}, a{a}")
                for i in range(4):
                    E(f"v_mul_f32 v{t+i}, v{t+i}, v{VM+qb}")
                addr = region(dw, si, qb, r4)
                if addr < 65536-1024:
                    E(f"ds_write_b128 v6, v[{t}:{t+3}] offset:{addr}")
                else:
                    E(f"v_add_u32 v7, {addr}, v6")
                    E(f"ds_write_b128 v7, v[{t}:{t+3}]")
    for qb in range(3):
        for r in range(16):
            E(f"v_accvgpr_read_b32 v{16+qb*16+r}, a{O(qb,w)+r}")
            E(f"v_mul_f32 v{16+qb*16+r}, v{16+qb*16+r}, v{VM+qb}")
    E("s_waitcnt lgkmcnt(0)")
    E("s_barrier")
    for si in range(3):
        for qb in range(3):
            for r4 in range(4):
                t = 64 + (qb*4+r4)*4
                addr = region(w, si, qb, r4)
                if addr < 65536-1024:
                    E(f"ds_read_b128 v[{t}:{t+3}], v6 offset:{addr}")
                else:
                    E(f"v_add_u32 v7, {addr}, v6")
                    E(f"ds_read_b128 v[{t}:{t+3}], v7")
        E("s_waitcnt lgkmcnt(0)")
        for i in range(48):
            E(f"v_add_f32 v{16+i}, v{16+i}, v{64+i}")
    for qb in range(3):
        for r4 in range(4):
            b = 16 + qb*16 + r4*4
            E(f"v_cvt_pk_bf16_f32 v{b}, v{b}, v{b+1}")
            E(f"v_cvt_pk_bf16_f32 v{b+1}, v{b+2}, v{b+3}")
            E(f"buffer_store_dwordx2 v[{b}:{b+1}], v{VOST}, s[24:27], 0 offen offset:{qb*8192+r4*16}" if qb*8192+r4*16 < 4096 else
              f"v_add_u32 v7, {qb*8192}, v{VOST}\n    buffer_store_dwordx2 v[{b}:{b+1}], v7, s[24:27], 0 offen offset:{r4*16}")
    if PROF:
        E("s_memtime s[56:57]")
        E("s_memrealtime s[66:67]")
        E("s_waitcnt lgkmcnt(0)")
        E("s_mov_b32 s62, 256"); E("s_mov_b32 s63, 0x00020000")
        E("s_sub_u32 s52, s52, s50"); E("s_sub_u32 s54, s54, s50"); E("s_sub_u32 s56, s56, s50")
        E("v_mov_b32 v2, s52"); E("v_mov_b32 v3, s54"); E("v_mov_b32 v4, s56"); E("s_sub_u32 s66, s66, s64"); E("v_mov_b32 v5, s66")
        E(f"s_cmp_lg_u32 s{S_W}, 0")
        E(f"s_cbranch_scc1 SKIP_{w}")
        E("s_and_b32 s69, s2, 7"); E("s_lshl_b32 s69, s69, 2")
        E("v_mov_b32 v8, s66"); E("v_mov_b32 v9, s52"); E("v_mov_b32 v12, s69")
        E("s_lshr_b32 s70, s56, 4"); E("s_lshl_b32 s70, s70, 16"); E("s_or_b32 s70, s70, s66")
        E("v_mov_b32 v8, s70")
        E("s_mov_b64 exec, 1")
        E("buffer_atomic_umax v8, v12, s[60:63], 0 offen")
        E("buffer_atomic_umax v9, v12, s[60:63], 0 offen offset:32")
        E("s_mov_b64 exec, -1")
        out.append(f"SKIP_{w}:")
    E("s_endpgm")
L("L_END")
E("s_endpgm")
for qb in range(3):
    if not NOCOMP: rare_path(qb, f"{qb}")
out.append('.section .rodata,"a"')
out.append('.p2align 6')
out.append('.amdhsa_kernel standalone__gqa_softmax__near_ridge_kernel')
out.append(f'  .amdhsa_next_free_vgpr 512')
out.append('  .amdhsa_next_free_sgpr 72')
out.append('  .amdhsa_accum_offset 256')
out.append('  .amdhsa_group_segment_fixed_size 0')
out.append('  .amdhsa_kernarg_size 48')
out.append('  .amdhsa_user_sgpr_count 2')
out.append('  .amdhsa_user_sgpr_kernarg_segment_ptr 1')
out.append('  .amdhsa_system_sgpr_workgroup_id_x 1')
out.append('.end_amdhsa_kernel')
open(sys.argv[1] if len(sys.argv) > 1 else 'standalone__gqa_softmax__near_ridge.s', 'w').write("\n".join(out) + "\n")
```

```python
import sys, os, math, struct
PROF = int(os.environ.get('PROF','0'))
STAMPK = int(os.environ.get('STAMPK','9'))
NODMA = int(os.environ.get('NODMA','0'))
PSEL = int(os.environ.get('PSEL','52'))
NT = os.environ.get('NT','nt')
if NT: NT += ' '
GS = 32768
NBLK = 16

out = []
def E(s): out.append("    " + s)
def L(s): out.append(s + ":")
def STAMP(k):
    if PROF and STAMPK == k: E('s_memtime s[52:53]')
def f2u(x): return struct.unpack('<I', struct.pack('<f', x))[0]

def O(qb, db): return (qb*4+db)*16
VS = 16; VP = 64; VK = 88; VV = 120; VQ2 = 152
VMB = 184
VONE = 196
VM = 200; VMP = 203; VTHR = 206; VL = 209
VT = 212
VKA = 220
VVA = 228
VDMA = 236
VLANE = 240; VOST = 241
def Qreg(qb, t):
    if qb < 2: return ('a', 192 + (qb*8+t)*4)
    return ('v', VQ2 + t*4)
def rr(kind, base, n): return f"{kind}[{base}:{base+n-1}]"
S_W = 28; S_C = 29; S_J = 31; S_RBASE = 39
S_SV = 34; S_SV2 = 35; S_SK = 36; S_SK2 = 37
def S(qb, i): return VS + qb*16 + i
def P(qb, i): return VP + qb*8 + i
def Kf(t): return VK + t*4
def Vf(db, s): return VV + (db*2+s)*4
KSLOT = [0, 8192]; VSLOT = [16384, 24576]; QSLOT = 32768

def dma_ops(srd, so, so2, slot):
    g = []
    for i in range(8):
        ops = []
        if i == 0: ops += [f"s_add_u32 m0, s{S_RBASE}, {slot}", "s_nop 0"]
        if i == 4: ops += [f"s_add_u32 m0, s{S_RBASE}, {slot+4096}", "s_nop 0"]
        ops.append(f"buffer_load_dwordx4 v{VDMA+(i%4)}, s[{srd}:{srd+3}], s{so if i < 4 else so2} offen offset:{(i%4)*1024} {NT}lds")
        g.append(ops)
    return g

def softmax_ops(qb, lbl):
    s = lambda i: f"v{S(qb,i)}"
    t0, t1 = VT, VT+1
    head = [f"v_max3_f32 v{t0}, {s(0)}, {s(1)}, {s(2)}",
            f"v_max3_f32 v{t1}, {s(3)}, {s(4)}, {s(5)}",
            f"v_max3_f32 v{t0}, v{t0}, {s(6)}, {s(7)}",
            f"v_max3_f32 v{t1}, v{t1}, {s(8)}, {s(9)}",
            f"v_max3_f32 v{t0}, v{t0}, {s(10)}, {s(11)}",
            f"v_max3_f32 v{t1}, v{t1}, {s(12)}, {s(13)}",
            f"v_max3_f32 v{t0}, v{t0}, {s(14)}, {s(15)}",
            f"v_max_f32 v{t0}, v{t0}, v{t1}",
            f"v_cmp_gt_f32 vcc, v{t0}, v{VTHR+qb}",
            f"s_cbranch_vccnz RARE_{lbl}\nBACK_{lbl}:"]
    l = f"v{VL+qb}"
    seq = []
    for i in range(16 + 2):
        if i < 16: seq.append(f"v_exp_f32 {s(i)}, {s(i)}")
        if 0 <= i-2 < 16:
            seq.append(f"v_add_f32 {l}, {l}, {s(i-2)}")
            if (i-2) % 2 == 1:
                k = (i-2)//2
                seq.append(f"v_cvt_pk_bf16_f32 v{P(qb,k)}, {s(2*k)}, {s(2*k+1)}")
    return head, seq

def rare_path(qb, lbl):
    t0, t1, t2, t3 = VT, VT+1, VT+2, VT+3
    L(f"RARE_{lbl}")
    E(f"v_mov_b32 v{t1}, v{t0}")
    E("s_nop 1")
    E(f"v_permlane32_swap_b32 v{t0}, v{t1}")
    E(f"v_max_f32 v{t0}, v{t0}, v{t1}")
    E(f"v_add_f32 v{t0}, v{t0}, v{VMP+qb}")
    E(f"v_cvt_pk_bf16_f32 v{t1}, v{t0}, v{t0}")
    E(f"v_lshlrev_b32 v{t1}, 16, v{t1}")
    E(f"v_max_f32 v{t1}, v{t1}, v{VM+qb}")
    E(f"v_sub_f32 v{t2}, v{VMP+qb}, v{t1}")
    E(f"v_sub_f32 v{t3}, v{VM+qb}, v{t1}")
    E(f"v_exp_f32 v{t3}, v{t3}")
    E(f"v_mov_b32 v{VM+qb}, v{t1}")
    E(f"v_mov_b32 v{VMP+qb}, v{t1}")
    E(f"v_cvt_pk_bf16_f32 v{VMB+4*qb}, -v{t1}, 0")
    E(f"v_mov_b32 v{VTHR+qb}, 0x41000000")
    E(f"v_mul_f32 v{VL+qb}, v{VL+qb}, v{t3}")
    for i in range(16): E(f"v_add_f32 v{S(qb,i)}, v{S(qb,i)}, v{t2}")
    for db in range(4):
        for r in range(16):
            a = O(qb, db) + r
            tt = VT + 4 + (r % 4)
            E(f"v_accvgpr_read_b32 v{tt}, a{a}")
            E(f"v_mul_f32 v{tt}, v{tt}, v{t3}")
            E(f"v_accvgpr_write_b32 a{a}, v{tt}")
    E(f"s_branch BACK_{lbl}")

def qk_mfmas(qb):
    sreg = f"v[{S(qb,0)}:{S(qb,15)}]"
    ops = [f"v_mfma_f32_32x32x16_bf16 {sreg}, v[{VONE}:{VONE+3}], v[{VMB+4*qb}:{VMB+4*qb+3}], 0"]
    for t in range(8):
        k, b = Qreg(qb, t)
        ops.append(f"v_mfma_f32_32x32x16_bf16 {sreg}, v[{Kf(t)}:{Kf(t)+3}], {rr(k,b,4)}, {sreg}")
    return ops
def pv_mfmas(qb):
    ops = []
    for s in range(2):
        for db in range(4):
            o = O(qb, db)
            ops.append(f"v_mfma_f32_32x32x16_bf16 a[{o}:{o+15}], v[{Vf(db,s)}:{Vf(db,s)+3}], v[{P(qb,4*s)}:{P(qb,4*s)+3}], a[{o}:{o+15}]")
    return ops
def k_reads(slot):
    return [[f"ds_read_b128 v[{Kf(t)}:{Kf(t)+3}], v{VKA+t} offset:{slot}"] for t in range(8)]
def v_reads(slot):
    per = {}
    for s in range(2):
        for db in range(4):
            lst = []
            for sec in range(2):
                r = Vf(db, s) + 2*sec
                lst.append(f"ds_read_b64_tr_b16 v[{r}:{r+1}], v{VVA+db*2+sec} offset:{slot + sec*2048 + s*4096}")
            per[(s, db)] = lst
    return per

def cost(op):
    if op.startswith('v_exp') or op.startswith('v_rcp'): return 8
    if op.startswith('v_'): return 4
    if op.startswith('ds_'): return 4
    if op.startswith('buffer_load'): return 8
    if op.startswith('s_nop'): return 4
    return 1

NM = 17
def emit_slot(qb, par, lbl, dmas):
    nq = (qb+1) % 3; pq = (qb+2) % 3
    mf = qk_mfmas(nq) + pv_mfmas(pq)
    head, tail = softmax_ops(qb, lbl)
    aux = [[] for _ in range(NM)]; pre = [[] for _ in range(NM)]
    if qb == 0:
        vper = v_reads(VSLOT[par])
        pre[9] += [f"s_waitcnt vmcnt({WAIT_V})"]
        idx = 9
        for s_ in range(2):
            for db in range(4):
                aux[idx] += vper[(s_, db)]; idx += 1
    elif qb == 1:
        kper = k_reads(KSLOT[1-par])
        pre[1] += [f"s_waitcnt vmcnt({WAIT_K})"]
        for t in range(8): aux[1+t] += kper[t]
        pre[9] += ["s_waitcnt lgkmcnt(8)"]
    else:
        pre[1] += ["s_waitcnt lgkmcnt(0)"]
    for g, ops in dmas.items(): aux[g] += ops
    valu = head + tail
    total = sum(cost(v) for v in valu) + sum(cost(o) for l_ in aux for o in l_) + sum(cost(o) for l_ in pre for o in l_)
    pos = 0; acc = 0
    for i in range(NM):
        for o in pre[i]: E(o); acc += cost(o)
        E(mf[i])
        for o in aux[i]: E(o); acc += cost(o)
        target = total * (i+1) / NM
        while pos < len(valu) and (acc + cost(valu[pos])/2 <= target or i == NM-1):
            E(valu[pos]); acc += cost(valu[pos]); pos += 1

hdr = open('standalone__gqa_softmax__near_ridge.s.ref').read().split('\n')
for line in hdr:
    if line.startswith('; @launch'):
        out.append("; @launch grid=(256,1,1) block=(256,1,1) lds=163840"); continue
    if line.startswith(';'): out.append(line); continue
    break
out += ['.amdgcn_target "amdgcn-amd-amdhsa--gfx950"', '.text', '.globl standalone__gqa_softmax__near_ridge_kernel',
        '.p2align 8', '.type standalone__gqa_softmax__near_ridge_kernel,@function']
L("standalone__gqa_softmax__near_ridge_kernel")
E("s_cmp_ge_u32 s2, 256")
E("s_cbranch_scc1 L_END")
E("s_load_dwordx4 s[4:7], s[0:1], 0")
E("s_load_dwordx4 s[8:11], s[0:1], 16")
if PROF:
    E("s_load_dwordx2 s[60:61], s[0:1], 32")
    E("s_memtime s[50:51]")
    E("s_memrealtime s[64:65]")
E("v_lshrrev_b32 v1, 6, v0")
E(f"v_and_b32 v{VLANE}, 63, v0")
E(f"v_readfirstlane_b32 s{S_W}, v1")
E("s_and_b32 s40, s2, 7"); E("s_lshr_b32 s41, s2, 3"); E("s_lshr_b32 s42, s41, 1"); E("s_lshl_b32 s42, s42, 3")
E("s_add_u32 s42, s42, s40"); E("s_and_b32 s41, s41, 1"); E("s_lshl_b32 s43, s42, 1"); E("s_add_u32 s43, s43, s41")
E(f"s_mul_i32 s{S_RBASE}, s{S_W}, 40960")
c = (128 ** -0.5) * math.log2(math.e)
E(f"s_mov_b32 s{S_C}, 0x{f2u(c):08x}")
E(f"v_lshrrev_b32 v2, 5, v{VLANE}")
E(f"v_and_b32 v3, 31, v{VLANE}")
E(f"v_lshrrev_b32 v4, 4, v{VLANE}")
E(f"v_and_b32 v5, 15, v{VLANE}")
E("v_lshlrev_b32 v6, 2, v4"); E("v_xor_b32 v5, v5, v6"); E("v_lshlrev_b32 v5, 4, v5")
E(f"v_lshl_add_u32 v{VDMA}, v4, 8, v5")
for ii in range(1, 4): E(f"v_xor_b32 v{VDMA+ii}, {ii<<4}, v{VDMA}")
E("s_waitcnt lgkmcnt(0)")
E("s_mul_i32 s44, s43, 24576")
E("s_add_u32 s12, s4, s44"); E("s_addc_u32 s13, s5, 0"); E("s_mov_b32 s14, 24576"); E("s_mov_b32 s15, 0x00020000")
E("s_add_u32 s24, s10, s44"); E("s_addc_u32 s25, s11, 0"); E("s_mov_b32 s26, 24576"); E("s_mov_b32 s27, 0x00020000")
E("s_lshl_b32 s44, s42, 19"); E(f"s_lshl_b32 s45, s{S_W}, 13"); E("s_add_u32 s44, s44, s45"); E("s_sub_u32 s47, 524288, s45")
E("s_add_u32 s16, s6, s44"); E("s_addc_u32 s17, s7, 0"); E("s_mov_b32 s18, s47"); E("s_mov_b32 s19, 0x00020000")
E("s_add_u32 s20, s8, s44"); E("s_addc_u32 s21, s9, 0"); E("s_mov_b32 s22, s47"); E("s_mov_b32 s23, 0x00020000")
E(f"s_mul_i32 s48, s{S_W}, 6144")
E(f"v_lshlrev_b32 v9, 4, v{VLANE}")
for i in range(6):
    E(f"buffer_load_dwordx4 v[{16+4*i}:{19+4*i}], v9, s[12:15], s48 offen offset:{i*1024}" if i < 4 else
      f"buffer_load_dwordx4 v[{16+4*i}:{19+4*i}], v13, s[12:15], s48 offen offset:{(i-4)*1024}")
    if i == 0: E("v_add_u32 v13, 4096, v9")
E(f"s_mov_b32 s{S_SK}, 0"); E(f"s_mov_b32 s{S_SK2}, 4096"); E(f"s_mov_b32 s{S_SV}, 0"); E(f"s_mov_b32 s{S_SV2}, 4096")
for g in dma_ops(16, S_SK, S_SK2, KSLOT[0]):
    for o in g: E(o)
E("v_and_b32 v4, 3, v3"); E("v_lshlrev_b32 v4, 2, v4"); E("v_bfe_u32 v5, v3, 2, 2"); E("v_or_b32 v4, v4, v5")
E("v_xor_b32 v4, v4, v2"); E("v_lshlrev_b32 v4, 4, v4"); E("v_lshl_add_u32 v4, v3, 8, v4")
E(f"v_add_u32 v4, s{S_RBASE}, v4")
for t in range(8): E(f"v_xor_b32 v{VKA+t}, {t<<5}, v4")
E(f"v_bfe_u32 v4, v{VLANE}, 4, 1"); E(f"v_bfe_u32 v5, v{VLANE}, 2, 2"); E(f"v_and_b32 v6, 3, v{VLANE}")
E("v_lshrrev_b32 v7, 1, v6"); E("v_lshl_add_u32 v7, v4, 1, v7"); E("v_xor_b32 v7, v7, v2"); E("v_lshl_or_b32 v7, v5, 2, v7")
E("v_lshlrev_b32 v7, 4, v7"); E("v_and_b32 v6, 1, v6"); E("v_lshl_add_u32 v7, v6, 3, v7"); E("v_lshl_add_u32 v8, v2, 2, v5")
E("v_lshl_add_u32 v7, v8, 8, v7"); E(f"v_add_u32 v7, s{S_RBASE}, v7")
for db in range(4):
    for sec in range(2): E(f"v_xor_b32 v{VVA+db*2+sec}, {(db<<6)^(sec<<5)}, v7")
E(f"s_lshl_b32 s44, s{S_W}, 6"); E("v_lshlrev_b32 v4, 4, v2"); E("v_lshl_add_u32 v4, v3, 8, v4"); E(f"v_add_u32 v{VOST}, s44, v4")
for qb in range(3):
    E(f"v_add_u32 v4, {32*qb}, v3")
    E("v_mul_u32_u24 v5, 2731, v4"); E("v_lshrrev_b32 v5, 16, v5"); E("v_mul_u32_u24 v6, 24, v5"); E("v_sub_u32 v6, v4, v6")
    E("v_and_b32 v7, 3, v6"); E("v_lshlrev_b32 v7, 2, v7"); E("v_bfe_u32 v8, v6, 2, 2"); E("v_or_b32 v7, v7, v8")
    E("v_xor_b32 v7, v7, v2"); E("v_lshlrev_b32 v7, 4, v7"); E("v_lshl_add_u32 v7, v6, 8, v7")
    E("v_mul_u32_u24 v5, 40960, v5"); E("v_add_u32 v7, v7, v5"); E(f"v_add_u32 v{10+qb}, {QSLOT}, v7")
for qb in range(3):
    E(f"v_mov_b32 v{VM+qb}, 0xff800000"); E(f"v_mov_b32 v{VTHR+qb}, 0xff800000"); E(f"v_mov_b32 v{VL+qb}, 0"); E(f"v_mov_b32 v{VMP+qb}, 0")
for i in range(12): E(f"v_mov_b32 v{VMB+i}, 0")
for i in range(4): E(f"v_mov_b32 v{VONE+i}, 0")
E("v_mov_b32 v4, 0x3f80"); E("v_cmp_eq_u32 vcc, 0, v2"); E("s_nop 1"); E(f"v_cndmask_b32 v{VONE}, 0, v4, vcc")
E(f"s_add_u32 s47, s{S_RBASE}, {QSLOT}")
for i in range(4): E(f"v_add_u32 v{VT+i}, s47, v{VDMA+i}")
initops = [f"v_mov_b32 v{VV+i}, 0" for i in range(32)] + [f"v_mov_b32 v{VP+i}, 0" for i in range(24)] + [f"v_accvgpr_write_b32 a{i}, 0" for i in range(192)]
g = dma_ops(20, S_SV, S_SV2, VSLOT[0])
per = (len(initops) + 7)//8
for i in range(8):
    for o in g[i]: E(o)
    for o in initops[i*per:(i+1)*per]: E(o)
STAMP(3)
E("s_waitcnt vmcnt(16)")
STAMP(4)
for i in range(6):
    for r in range(4):
        x = 16 + 4*i + r
        lo, hi = 40 + (r%2)*2, 41 + (r%2)*2
        E(f"v_lshlrev_b32 v{lo}, 16, v{x}")
        E(f"v_and_b32 v{hi}, 0xffff0000, v{x}")
        E(f"v_mul_f32 v{lo}, s{S_C}, v{lo}")
        E(f"v_mul_f32 v{hi}, s{S_C}, v{hi}")
        E(f"v_cvt_pk_bf16_f32 v{x}, v{lo}, v{hi}")
    E(f"ds_write_b128 v{VT+(i%4)}, v[{16+4*i}:{19+4*i}] offset:{i*1024}")
E(f"s_mov_b32 s{S_SK}, {GS}"); E(f"s_mov_b32 s{S_SK2}, {GS+4096}")
g = dma_ops(16, S_SK, S_SK2, KSLOT[1])
for i in range(4):
    for o in g[i]: E(o)
E("s_waitcnt lgkmcnt(0)")
E("s_barrier")
STAMP(5)
gi = 4
for qb in range(3):
    for t in range(8):
        k, b_ = Qreg(qb, t)
        a_ = 10+qb
        if t:
            E(f"v_xor_b32 v{VT+4+(t%4)}, {t<<5}, v{10+qb}"); a_ = VT+4+(t%4)
        E(f"ds_read_b128 {rr(k,b_,4)}, v{a_}")
        if t % 4 == 3 and gi < 8:
            for o in g[gi]: E(o)
            gi += 1
while gi < 8:
    for o in g[gi]: E(o)
    gi += 1
E("s_waitcnt vmcnt(16)")
STAMP(6)
for lst in k_reads(KSLOT[0]):
    for o in lst: E(o)
E(f"s_mov_b32 s{S_SV}, {GS}"); E(f"s_mov_b32 s{S_SV2}, {GS+4096}")
g = dma_ops(20, S_SV, S_SV2, VSLOT[1])
for i in range(8):
    for o in g[i]: E(o)
E("s_waitcnt lgkmcnt(0)")
qk0 = qk_mfmas(0)
E(f"s_mov_b32 s{S_SK}, {2*GS}")
g = dma_ops(16, S_SK, S_SK2, KSLOT[0])
for i, o in enumerate(qk0):
    E(o)
    if i in (1, 3, 5, 7):
        for oo in g[(i-1)//2]: E(oo)
E("s_nop 15")
E(f"s_mov_b32 s{S_J}, 0")
E(f"s_mov_b32 s{S_SV}, {2*GS}"); E(f"s_mov_b32 s{S_SV2}, {2*GS+4096}")
E(f"s_mov_b32 s{S_SK}, {3*GS}"); E(f"s_mov_b32 s{S_SK2}, {2*GS+4096}")
STAMP(9)
L("LOOP")
WAIT_V = 24
WAIT_K = 16
for par in range(2):
    kb = dma_ops(16, S_SK, S_SK2, KSLOT[par])[4:8]
    vv = dma_ops(20, S_SV, S_SV2, VSLOT[par])
    ka = dma_ops(16, S_SK, S_SK2, KSLOT[1-par])[0:4]
    sched = [dict(), dict(), dict()]
    if not NODMA:
        for i, gp in enumerate((1, 3, 5, 7)): sched[0][gp] = kb[i]
        for i, gp in enumerate((9, 11, 13, 15)): sched[1][gp] = vv[i]
        for i, gp in enumerate((1, 3, 5, 7)): sched[2][gp] = vv[4+i]
        for i, gp in enumerate((9, 11, 13, 15)): sched[2][gp] = ka[i]
    for qb in range(3):
        emit_slot(qb, par, f"{par}_{qb}", sched[qb])
    for r_ in (S_SV, S_SV2, S_SK, S_SK2): E(f"s_add_u32 s{r_}, s{r_}, {GS}")
E(f"s_add_u32 s{S_J}, s{S_J}, 2")
E(f"s_cmp_lt_u32 s{S_J}, {NBLK}")
E("s_cbranch_scc1 LOOP")
if PROF: E("s_memtime s[54:55]")
for o in pv_mfmas(2): E(o)
E("s_nop 15"); E("s_nop 7")
for qb in range(3):
    E(f"v_mov_b32 v{VT}, v{VL+qb}")
    E("s_nop 1")
    E(f"v_permlane32_swap_b32 v{VL+qb}, v{VT}")
    E(f"v_add_f32 v{VL+qb}, v{VL+qb}, v{VT}")
STAMP(30)
E("s_waitcnt vmcnt(0) lgkmcnt(0)")
STAMP(31)
E(f"v_and_b32 v3, 31, v{VLANE}")
E("v_lshlrev_b32 v4, 3, v3")
E(f"v_add_u32 v5, s{S_RBASE}, v4")
for qb in range(3):
    E(f"v_mov_b32 v{VT}, v{VMP+qb}")
    E(f"v_mov_b32 v{VT+1}, v{VL+qb}")
    E(f"ds_write_b64 v5, v[{VT}:{VT+1}] offset:{qb*256}")
E(f"v_lshlrev_b32 v6, 4, v{VLANE}")
E(f"v_add_u32 v7, s{S_RBASE}, v6")
for w in range(4):
    if w < 3:
        E(f"s_cmp_eq_u32 s{S_W}, {w}"); E(f"s_cbranch_scc1 EPI_{w}")
    else: E(f"s_branch EPI_{w}")
def poff(dslot, qb, r4): return 1024 + ((dslot*3+qb)*4 + r4)*1024
for w in range(4):
    L(f"EPI_{w}")
    for dw in range(4):
        if dw == w: continue
        dslot = dw if dw < w else dw-1
        for qb in range(3):
            for r4 in range(4):
                a_ = O(qb, dw) + r4*4
                E(f"ds_write_b128 v7, a[{a_}:{a_+3}] offset:{poff(dslot,qb,r4)}")
    for qb in range(3):
        for r in range(16): E(f"v_accvgpr_read_b32 v{16+qb*16+r}, a{O(qb,w)+r}")
    STAMP(32)
    E("s_waitcnt lgkmcnt(0)")
    STAMP(33)
    E("s_barrier")
    STAMP(34)
    for qb in range(3):
        for ws in range(4):
            r = 160 + (qb*4+ws)*2
            if ws*40960 < 65536: E(f"ds_read_b64 v[{r}:{r+1}], v4 offset:{ws*40960+qb*256}")
            else:
                E(f"v_add_u32 v8, {ws*40960}, v4")
                E(f"ds_read_b64 v[{r}:{r+1}], v8 offset:{qb*256}")
    srcs = [ws for ws in range(4) if ws != w]
    for k_, ws in enumerate(srcs): E(f"v_add_u32 v{9+k_}, {ws*40960}, v6")
    def read_src(k_, base):
        ws = srcs[k_]
        dslot = w if w < ws else w-1
        for qb in range(3):
            for r4 in range(4):
                t = base + (qb*4+r4)*4
                E(f"ds_read_b128 v[{t}:{t+3}], v{9+k_} offset:{poff(dslot,qb,r4)}")
    read_src(0, 64)
    E("s_waitcnt lgkmcnt(12)")
    for qb in range(3):
        r = 160 + qb*8
        E(f"v_max_f32 v{VT}, v{r}, v{r+2}")
        E(f"v_max3_f32 v{VT}, v{VT}, v{r+4}, v{r+6}")
        for ws in range(4):
            E(f"v_sub_f32 v{r+2*ws}, v{r+2*ws}, v{VT}")
            E(f"v_exp_f32 v{r+2*ws}, v{r+2*ws}")
        E("s_nop 0")
        E(f"v_mul_f32 v{VT+1}, v{r}, v{r+1}")
        for ws in range(1, 4): E(f"v_fmac_f32 v{VT+1}, v{r+2*ws}, v{r+2*ws+1}")
        E(f"v_rcp_f32 v{VT+1}, v{VT+1}")
        E("s_nop 0")
        for ws in range(4): E(f"v_mul_f32 v{r+2*ws}, v{r+2*ws}, v{VT+1}")
    for qb in range(3):
        for r in range(16): E(f"v_mul_f32 v{16+qb*16+r}, v{16+qb*16+r}, v{160+qb*8+2*w}")
    read_src(1, 112)
    E("s_waitcnt lgkmcnt(12)")
    for qb in range(3):
        for r in range(16): E(f"v_fmac_f32 v{16+qb*16+r}, v{64+qb*16+r}, v{160+qb*8+2*srcs[0]}")
    read_src(2, 64)
    E("s_waitcnt lgkmcnt(12)")
    for qb in range(3):
        for r in range(16): E(f"v_fmac_f32 v{16+qb*16+r}, v{112+qb*16+r}, v{160+qb*8+2*srcs[1]}")
    E("s_waitcnt lgkmcnt(0)")
    for qb in range(3):
        for r in range(16): E(f"v_fmac_f32 v{16+qb*16+r}, v{64+qb*16+r}, v{160+qb*8+2*srcs[2]}")
    STAMP(35)
    for qb in range(3):
        if qb > 0: E(f"v_add_u32 v8, {qb*8192}, v{VOST}")
        for kp in range(2):
            b_ = 16 + qb*16 + kp*8
            t = 112 + (qb*2+kp)*4
            E(f"v_cvt_pk_bf16_f32 v{t}, v{b_}, v{b_+1}")
            E(f"v_cvt_pk_bf16_f32 v{t+1}, v{b_+2}, v{b_+3}")
            E(f"v_cvt_pk_bf16_f32 v{t+2}, v{b_+4}, v{b_+5}")
            E(f"v_cvt_pk_bf16_f32 v{t+3}, v{b_+6}, v{b_+7}")
            E("s_nop 1")
            E(f"v_permlane32_swap_b32 v{t}, v{t+2}")
            E(f"v_permlane32_swap_b32 v{t+1}, v{t+3}")
            va = VOST if qb == 0 else 8
            E(f"buffer_store_dwordx4 v[{t}:{t+3}], v{va}, s[24:27], 0 offen offset:{kp*32}")
    if PROF:
        E("s_memtime s[56:57]")
        E("s_memrealtime s[66:67]")
        E("s_waitcnt lgkmcnt(0)")
        E("s_mov_b32 s62, 256"); E("s_mov_b32 s63, 0x00020000")
        E("s_sub_u32 s52, s52, s50"); E("s_sub_u32 s54, s54, s50"); E("s_sub_u32 s56, s56, s50"); E("s_sub_u32 s66, s66, s64")
        E(f"s_cmp_lg_u32 s{S_W}, 0")
        E(f"s_cbranch_scc1 SKIP_{w}")
        E("s_and_b32 s69, s2, 7"); E("s_lshl_b32 s69, s69, 2")
        E(f"v_mov_b32 v9, s{PSEL}"); E("v_mov_b32 v12, s69")
        E("s_lshr_b32 s70, s56, 4"); E("s_lshl_b32 s70, s70, 16"); E("s_or_b32 s70, s70, s66")
        E("v_mov_b32 v8, s70")
        E("s_mov_b64 exec, 1")
        E("buffer_atomic_umax v8, v12, s[60:63], 0 offen")
        E("buffer_atomic_umax v9, v12, s[60:63], 0 offen offset:32")
        E("s_mov_b64 exec, -1")
        out.append(f"SKIP_{w}:")
    E("s_endpgm")
L("L_END")
E("s_endpgm")
for par in range(2):
    for qb in range(3): rare_path(qb, f"{par}_{qb}")
out += ['.section .rodata,"a"', '.p2align 6', '.amdhsa_kernel standalone__gqa_softmax__near_ridge_kernel',
        '  .amdhsa_next_free_vgpr 512', '  .amdhsa_next_free_sgpr 72', '  .amdhsa_accum_offset 256',
        '  .amdhsa_group_segment_fixed_size 0', '  .amdhsa_kernarg_size 48', '  .amdhsa_user_sgpr_count 2',
        '  .amdhsa_user_sgpr_kernarg_segment_ptr 1', '  .amdhsa_system_sgpr_workgroup_id_x 1', '.end_amdhsa_kernel']
open(sys.argv[1] if len(sys.argv) > 1 else 'standalone__gqa_softmax__near_ridge.s', 'w').write("\n".join(out) + "\n")
```

```python
import sys, os, math, struct
PROF = int(os.environ.get('PROF','0'))
STAMPK = int(os.environ.get('STAMPK','9'))
NODMA = int(os.environ.get('NODMA','0'))
LEAD = int(os.environ.get('LEAD','2'))
PSEL = int(os.environ.get('PSEL','52'))
NT = os.environ.get('NT','nt')
if NT: NT += ' '
GS = 32768
NBLK = 16

out = []
def E(s): out.append("    " + s)
def L(s): out.append(s + ":")
def STAMP(k):
    if PROF and STAMPK == k: E('s_memtime s[52:53]')
def f2u(x): return struct.unpack('<I', struct.pack('<f', x))[0]

def O(qb, db): return (qb*4+db)*16
VS = 16; VP = 64; VK = 88; VV = 120; VQ2 = 152
VMB = 184
VONE = 196
VM = 200; VMP = 203; VTHR = 206; VL = 209
VT = 212
VKA = 220
VVA = 228
VDMA = 236
VLANE = 240; VOST = 241
def Qreg(qb, t):
    if qb < 2: return ('a', 192 + (qb*8+t)*4)
    return ('v', VQ2 + t*4)
def rr(kind, base, n): return f"{kind}[{base}:{base+n-1}]"
S_W = 28; S_C = 29; S_J = 31; S_RBASE = 39
S_SV = 34; S_SV2 = 35; S_SK = 36; S_SK2 = 37
def S(qb, i): return VS + qb*16 + i
def P(qb, i): return VP + qb*8 + i
def Kf(t): return VK + t*4
def Vf(db, s): return VV + (db*2+s)*4
KSLOT = [0, 8192]; VSLOT = [16384, 24576]; QSLOT = 32768

def dma_ops(srd, so, so2, slot):
    g = []
    for i in range(8):
        ops = []
        if i == 0: ops += [f"s_add_u32 m0, s{S_RBASE}, {slot}", "s_nop 0"]
        if i == 4: ops += [f"s_add_u32 m0, s{S_RBASE}, {slot+4096}", "s_nop 0"]
        ops.append(f"buffer_load_dwordx4 v{VDMA+(i%4)}, s[{srd}:{srd+3}], s{so if i < 4 else so2} offen offset:{(i%4)*1024} {NT}lds")
        g.append(ops)
    return g

def softmax_ops(qb, lbl):
    s = lambda i: f"v{S(qb,i)}"
    t0, t1 = VT, VT+1
    head = [f"v_max3_f32 v{t0}, {s(0)}, {s(1)}, {s(2)}",
            f"v_max3_f32 v{t1}, {s(3)}, {s(4)}, {s(5)}",
            f"v_max3_f32 v{t0}, v{t0}, {s(6)}, {s(7)}",
            f"v_max3_f32 v{t1}, v{t1}, {s(8)}, {s(9)}",
            f"v_max3_f32 v{t0}, v{t0}, {s(10)}, {s(11)}",
            f"v_max3_f32 v{t1}, v{t1}, {s(12)}, {s(13)}",
            f"v_max3_f32 v{t0}, v{t0}, {s(14)}, {s(15)}",
            f"v_max_f32 v{t0}, v{t0}, v{t1}",
            f"v_cmp_gt_f32 vcc, v{t0}, v{VTHR+qb}",
            f"s_cbranch_vccnz RARE_{lbl}\nBACK_{lbl}:"]
    l = f"v{VL+qb}"
    seq = []
    for i in range(16 + 2):
        if i < 16: seq.append(f"v_exp_f32 {s(i)}, {s(i)}")
        if 0 <= i-2 < 16:
            seq.append(f"v_add_f32 {l}, {l}, {s(i-2)}")
            if (i-2) % 2 == 1:
                k = (i-2)//2
                seq.append(f"v_cvt_pk_bf16_f32 v{P(qb,k)}, {s(2*k)}, {s(2*k+1)}")
    return head, seq

def rare_path(qb, lbl):
    t0, t1, t2, t3 = VT, VT+1, VT+2, VT+3
    L(f"RARE_{lbl}")
    E(f"v_mov_b32 v{t1}, v{t0}")
    E("s_nop 1")
    E(f"v_permlane32_swap_b32 v{t0}, v{t1}")
    E(f"v_max_f32 v{t0}, v{t0}, v{t1}")
    E(f"v_add_f32 v{t0}, v{t0}, v{VMP+qb}")
    E(f"v_cvt_pk_bf16_f32 v{t1}, v{t0}, v{t0}")
    E(f"v_lshlrev_b32 v{t1}, 16, v{t1}")
    E(f"v_max_f32 v{t1}, v{t1}, v{VM+qb}")
    E(f"v_sub_f32 v{t2}, v{VMP+qb}, v{t1}")
    E(f"v_sub_f32 v{t3}, v{VM+qb}, v{t1}")
    E(f"v_exp_f32 v{t3}, v{t3}")
    E(f"v_mov_b32 v{VM+qb}, v{t1}")
    E(f"v_mov_b32 v{VMP+qb}, v{t1}")
    E(f"v_cvt_pk_bf16_f32 v{VMB+4*qb}, -v{t1}, 0")
    E(f"v_mov_b32 v{VTHR+qb}, 0x41000000")
    E(f"v_mul_f32 v{VL+qb}, v{VL+qb}, v{t3}")
    for i in range(16): E(f"v_add_f32 v{S(qb,i)}, v{S(qb,i)}, v{t2}")
    for db in range(4):
        for r in range(16):
            a = O(qb, db) + r
            tt = VT + 4 + (r % 4)
            E(f"v_accvgpr_read_b32 v{tt}, a{a}")
            E(f"v_mul_f32 v{tt}, v{tt}, v{t3}")
            E(f"v_accvgpr_write_b32 a{a}, v{tt}")
    E(f"s_branch BACK_{lbl}")

def qk_mfmas(qb):
    sreg = f"v[{S(qb,0)}:{S(qb,15)}]"
    ops = [f"v_mfma_f32_32x32x16_bf16 {sreg}, v[{VONE}:{VONE+3}], v[{VMB+4*qb}:{VMB+4*qb+3}], 0"]
    for t in range(8):
        k, b = Qreg(qb, t)
        ops.append(f"v_mfma_f32_32x32x16_bf16 {sreg}, v[{Kf(t)}:{Kf(t)+3}], {rr(k,b,4)}, {sreg}")
    return ops
def pv_mfmas(qb):
    ops = []
    for s in range(2):
        for db in range(4):
            o = O(qb, db)
            ops.append(f"v_mfma_f32_32x32x16_bf16 a[{o}:{o+15}], v[{Vf(db,s)}:{Vf(db,s)+3}], v[{P(qb,4*s)}:{P(qb,4*s)+3}], a[{o}:{o+15}]")
    return ops
def k_reads(slot):
    return [[f"ds_read_b128 v[{Kf(t)}:{Kf(t)+3}], v{VKA+t} offset:{slot}"] for t in range(8)]
def v_reads(slot):
    per = {}
    for s in range(2):
        for db in range(4):
            lst = []
            for sec in range(2):
                r = Vf(db, s) + 2*sec
                lst.append(f"ds_read_b64_tr_b16 v[{r}:{r+1}], v{VVA+db*2+sec} offset:{slot + sec*2048 + s*4096}")
            per[(s, db)] = lst
    return per

def cost(op):
    if op.startswith('v_exp') or op.startswith('v_rcp'): return 8
    if op.startswith('v_'): return 4
    if op.startswith('ds_'): return 4
    if op.startswith('buffer_load'): return 8
    if op.startswith('s_nop'): return 4
    return 1

NM = 17
def emit_slot(qb, par, lbl, dmas):
    nq = (qb+1) % 3; pq = (qb+2) % 3
    mf = qk_mfmas(nq) + pv_mfmas(pq)
    head, tail = softmax_ops(qb, lbl)
    aux = [[] for _ in range(NM)]; pre = [[] for _ in range(NM)]
    if qb == 0:
        vper = v_reads(VSLOT[par])
        pre[9] += [f"s_waitcnt vmcnt({WAIT_V})"]
        idx = 9
        for s_ in range(2):
            for db in range(4):
                aux[idx] += vper[(s_, db)]; idx += 1
    elif qb == 1:
        kper = k_reads(KSLOT[1-par])
        pre[1] += [f"s_waitcnt vmcnt({WAIT_K})"]
        for t in range(8): aux[1+t] += kper[t]
        pre[9] += ["s_waitcnt lgkmcnt(8)"]
    else:
        pre[1] += ["s_waitcnt lgkmcnt(0)"]
    for g, ops in dmas.items(): aux[g] += ops
    valu = head + tail
    total = sum(cost(v) for v in valu) + sum(cost(o) for l_ in aux for o in l_) + sum(cost(o) for l_ in pre for o in l_)
    pos = 0; acc = 0
    for i in range(NM):
        for o in pre[i]: E(o); acc += cost(o)
        E(mf[i])
        for o in aux[i]: E(o); acc += cost(o)
        target = total * (i+1) / NM
        while pos < len(valu) and (acc + cost(valu[pos])/2 <= target or i == NM-1):
            E(valu[pos]); acc += cost(valu[pos]); pos += 1

hdr = open('standalone__gqa_softmax__near_ridge.s.ref').read().split('\n')
for line in hdr:
    if line.startswith('; @launch'):
        out.append("; @launch grid=(256,1,1) block=(256,1,1) lds=163840"); continue
    if line.startswith(';'): out.append(line); continue
    break
out += ['.amdgcn_target "amdgcn-amd-amdhsa--gfx950"', '.text', '.globl standalone__gqa_softmax__near_ridge_kernel',
        '.p2align 8', '.type standalone__gqa_softmax__near_ridge_kernel,@function']
L("standalone__gqa_softmax__near_ridge_kernel")
E("s_cmp_ge_u32 s2, 256")
E("s_cbranch_scc1 L_END")
E("s_load_dwordx4 s[4:7], s[0:1], 0")
E("s_load_dwordx4 s[8:11], s[0:1], 16")
if PROF:
    E("s_load_dwordx2 s[60:61], s[0:1], 32")
    E("s_memtime s[50:51]")
    E("s_memrealtime s[64:65]")
E("v_lshrrev_b32 v1, 6, v0")
E(f"v_and_b32 v{VLANE}, 63, v0")
E(f"v_readfirstlane_b32 s{S_W}, v1")
E("s_and_b32 s40, s2, 7"); E("s_lshr_b32 s41, s2, 3"); E("s_lshr_b32 s42, s41, 1"); E("s_lshl_b32 s42, s42, 3")
E("s_add_u32 s42, s42, s40"); E("s_and_b32 s41, s41, 1"); E("s_lshl_b32 s43, s42, 1"); E("s_add_u32 s43, s43, s41")
E(f"s_mul_i32 s{S_RBASE}, s{S_W}, 40960")
E(f"s_lshr_b32 s30, s{S_W}, 1"); E("s_xor_b32 s30, s30, s41"); E("s_xor_b32 s30, s30, 1"); E(f"s_mul_i32 s30, s30, {LEAD}")
def FS(dst, x):
    E(f"s_add_u32 s46, s30, {x}"); E("s_and_b32 s46, s46, 15"); E(f"s_lshl_b32 s{dst}, s46, 15")
c = (128 ** -0.5) * math.log2(math.e)
E(f"s_mov_b32 s{S_C}, 0x{f2u(c):08x}")
E(f"v_lshrrev_b32 v2, 5, v{VLANE}")
E(f"v_and_b32 v3, 31, v{VLANE}")
E(f"v_lshrrev_b32 v4, 4, v{VLANE}")
E(f"v_and_b32 v5, 15, v{VLANE}")
E("v_lshlrev_b32 v6, 2, v4"); E("v_xor_b32 v5, v5, v6"); E("v_lshlrev_b32 v5, 4, v5")
E(f"v_lshl_add_u32 v{VDMA}, v4, 8, v5")
for ii in range(1, 4): E(f"v_xor_b32 v{VDMA+ii}, {ii<<4}, v{VDMA}")
E("s_waitcnt lgkmcnt(0)")
E("s_mul_i32 s44, s43, 24576")
E("s_add_u32 s12, s4, s44"); E("s_addc_u32 s13, s5, 0"); E("s_mov_b32 s14, 24576"); E("s_mov_b32 s15, 0x00020000")
E("s_add_u32 s24, s10, s44"); E("s_addc_u32 s25, s11, 0"); E("s_mov_b32 s26, 24576"); E("s_mov_b32 s27, 0x00020000")
E("s_lshl_b32 s44, s42, 19"); E(f"s_lshl_b32 s45, s{S_W}, 13"); E("s_add_u32 s44, s44, s45"); E("s_sub_u32 s47, 524288, s45")
E("s_add_u32 s16, s6, s44"); E("s_addc_u32 s17, s7, 0"); E("s_mov_b32 s18, s47"); E("s_mov_b32 s19, 0x00020000")
E("s_add_u32 s20, s8, s44"); E("s_addc_u32 s21, s9, 0"); E("s_mov_b32 s22, s47"); E("s_mov_b32 s23, 0x00020000")
E(f"s_mul_i32 s48, s{S_W}, 6144")
E(f"v_lshlrev_b32 v9, 4, v{VLANE}")
for i in range(6):
    E(f"buffer_load_dwordx4 v[{16+4*i}:{19+4*i}], v9, s[12:15], s48 offen offset:{i*1024}" if i < 4 else
      f"buffer_load_dwordx4 v[{16+4*i}:{19+4*i}], v13, s[12:15], s48 offen offset:{(i-4)*1024}")
    if i == 0: E("v_add_u32 v13, 4096, v9")
FS(S_SK, 0); E(f"s_add_u32 s{S_SK2}, s{S_SK}, 4096"); E(f"s_mov_b32 s{S_SV}, s{S_SK}"); E(f"s_mov_b32 s{S_SV2}, s{S_SK2}")
for g in dma_ops(16, S_SK, S_SK2, KSLOT[0]):
    for o in g: E(o)
E("v_and_b32 v4, 3, v3"); E("v_lshlrev_b32 v4, 2, v4"); E("v_bfe_u32 v5, v3, 2, 2"); E("v_or_b32 v4, v4, v5")
E("v_xor_b32 v4, v4, v2"); E("v_lshlrev_b32 v4, 4, v4"); E("v_lshl_add_u32 v4, v3, 8, v4")
E(f"v_add_u32 v4, s{S_RBASE}, v4")
for t in range(8): E(f"v_xor_b32 v{VKA+t}, {t<<5}, v4")
E(f"v_bfe_u32 v4, v{VLANE}, 4, 1"); E(f"v_bfe_u32 v5, v{VLANE}, 2, 2"); E(f"v_and_b32 v6, 3, v{VLANE}")
E("v_lshrrev_b32 v7, 1, v6"); E("v_lshl_add_u32 v7, v4, 1, v7"); E("v_xor_b32 v7, v7, v2"); E("v_lshl_or_b32 v7, v5, 2, v7")
E("v_lshlrev_b32 v7, 4, v7"); E("v_and_b32 v6, 1, v6"); E("v_lshl_add_u32 v7, v6, 3, v7"); E("v_lshl_add_u32 v8, v2, 2, v5")
E("v_lshl_add_u32 v7, v8, 8, v7"); E(f"v_add_u32 v7, s{S_RBASE}, v7")
for db in range(4):
    for sec in range(2): E(f"v_xor_b32 v{VVA+db*2+sec}, {(db<<6)^(sec<<5)}, v7")
E(f"s_lshl_b32 s44, s{S_W}, 6"); E("v_lshlrev_b32 v4, 4, v2"); E("v_lshl_add_u32 v4, v3, 8, v4"); E(f"v_add_u32 v{VOST}, s44, v4")
for qb in range(3):
    E(f"v_add_u32 v4, {32*qb}, v3")
    E("v_mul_u32_u24 v5, 2731, v4"); E("v_lshrrev_b32 v5, 16, v5"); E("v_mul_u32_u24 v6, 24, v5"); E("v_sub_u32 v6, v4, v6")
    E("v_and_b32 v7, 3, v6"); E("v_lshlrev_b32 v7, 2, v7"); E("v_bfe_u32 v8, v6, 2, 2"); E("v_or_b32 v7, v7, v8")
    E("v_xor_b32 v7, v7, v2"); E("v_lshlrev_b32 v7, 4, v7"); E("v_lshl_add_u32 v7, v6, 8, v7")
    E("v_mul_u32_u24 v5, 40960, v5"); E("v_add_u32 v7, v7, v5"); E(f"v_add_u32 v{10+qb}, {QSLOT}, v7")
for qb in range(3):
    E(f"v_mov_b32 v{VM+qb}, 0xff800000"); E(f"v_mov_b32 v{VTHR+qb}, 0xff800000"); E(f"v_mov_b32 v{VL+qb}, 0"); E(f"v_mov_b32 v{VMP+qb}, 0")
for i in range(12): E(f"v_mov_b32 v{VMB+i}, 0")
for i in range(4): E(f"v_mov_b32 v{VONE+i}, 0")
E("v_mov_b32 v4, 0x3f80"); E("v_cmp_eq_u32 vcc, 0, v2"); E("s_nop 1"); E(f"v_cndmask_b32 v{VONE}, 0, v4, vcc")
E(f"s_add_u32 s47, s{S_RBASE}, {QSLOT}")
for i in range(4): E(f"v_add_u32 v{VT+i}, s47, v{VDMA+i}")
initops = [f"v_mov_b32 v{VV+i}, 0" for i in range(32)] + [f"v_mov_b32 v{VP+i}, 0" for i in range(24)] + [f"v_accvgpr_write_b32 a{i}, 0" for i in range(192)]
g = dma_ops(20, S_SV, S_SV2, VSLOT[0])
per = (len(initops) + 7)//8
for i in range(8):
    for o in g[i]: E(o)
    for o in initops[i*per:(i+1)*per]: E(o)
STAMP(3)
E("s_waitcnt vmcnt(16)")
STAMP(4)
for i in range(6):
    for r in range(4):
        x = 16 + 4*i + r
        lo, hi = 40 + (r%2)*2, 41 + (r%2)*2
        E(f"v_lshlrev_b32 v{lo}, 16, v{x}")
        E(f"v_and_b32 v{hi}, 0xffff0000, v{x}")
        E(f"v_mul_f32 v{lo}, s{S_C}, v{lo}")
        E(f"v_mul_f32 v{hi}, s{S_C}, v{hi}")
        E(f"v_cvt_pk_bf16_f32 v{x}, v{lo}, v{hi}")
    E(f"ds_write_b128 v{VT+(i%4)}, v[{16+4*i}:{19+4*i}] offset:{i*1024}")
FS(S_SK, 1); E(f"s_add_u32 s{S_SK2}, s{S_SK}, 4096")
g = dma_ops(16, S_SK, S_SK2, KSLOT[1])
for i in range(4):
    for o in g[i]: E(o)
E("s_waitcnt lgkmcnt(0)")
E("s_barrier")
STAMP(5)
gi = 4
for qb in range(3):
    for t in range(8):
        k, b_ = Qreg(qb, t)
        a_ = 10+qb
        if t:
            E(f"v_xor_b32 v{VT+4+(t%4)}, {t<<5}, v{10+qb}"); a_ = VT+4+(t%4)
        E(f"ds_read_b128 {rr(k,b_,4)}, v{a_}")
        if t % 4 == 3 and gi < 8:
            for o in g[gi]: E(o)
            gi += 1
while gi < 8:
    for o in g[gi]: E(o)
    gi += 1
E("s_waitcnt vmcnt(16)")
STAMP(6)
for lst in k_reads(KSLOT[0]):
    for o in lst: E(o)
E(f"s_mov_b32 s{S_SV}, s{S_SK}"); E(f"s_mov_b32 s{S_SV2}, s{S_SK2}")
g = dma_ops(20, S_SV, S_SV2, VSLOT[1])
for i in range(8):
    for o in g[i]: E(o)
E("s_waitcnt lgkmcnt(0)")
qk0 = qk_mfmas(0)
FS(S_SK, 2)
g = dma_ops(16, S_SK, S_SK2, KSLOT[0])
for i, o in enumerate(qk0):
    E(o)
    if i in (1, 3, 5, 7):
        for oo in g[(i-1)//2]: E(oo)
E("s_nop 15")
E(f"s_mov_b32 s{S_J}, 0")
E(f"s_mov_b32 s{S_SV}, s{S_SK}"); E(f"s_add_u32 s{S_SV2}, s{S_SV}, 4096"); E(f"s_mov_b32 s{S_SK2}, s{S_SV2}")
FS(S_SK, 3)
STAMP(9)
L("LOOP")
WAIT_V = 24
WAIT_K = 16
for par in range(2):
    kb = dma_ops(16, S_SK, S_SK2, KSLOT[par])[4:8]
    vv = dma_ops(20, S_SV, S_SV2, VSLOT[par])
    ka = dma_ops(16, S_SK, S_SK2, KSLOT[1-par])[0:4]
    sched = [dict(), dict(), dict()]
    if not NODMA:
        for i, gp in enumerate((1, 3, 5, 7)): sched[0][gp] = kb[i]
        for i, gp in enumerate((9, 11, 13, 15)): sched[1][gp] = vv[i]
        for i, gp in enumerate((1, 3, 5, 7)): sched[2][gp] = vv[4+i]
        for i, gp in enumerate((9, 11, 13, 15)): sched[2][gp] = ka[i]
    for qb in range(3):
        emit_slot(qb, par, f"{par}_{qb}", sched[qb])
    E(f"s_mov_b32 s{S_SV}, s{S_SK}"); E(f"s_add_u32 s{S_SV2}, s{S_SV}, 4096"); E(f"s_mov_b32 s{S_SK2}, s{S_SV2}")
    E(f"s_add_u32 s47, s{S_J}, {par+4}")
    E("s_add_u32 s46, s47, s30"); E("s_and_b32 s46, s46, 15"); E("s_lshl_b32 s46, s46, 15")
    E("s_cmp_lt_u32 s47, 16"); E(f"s_cselect_b32 s{S_SK}, s46, 0x7ff00000")
E(f"s_add_u32 s{S_J}, s{S_J}, 2")
E(f"s_cmp_lt_u32 s{S_J}, {NBLK}")
E("s_cbranch_scc1 LOOP")
if PROF: E("s_memtime s[54:55]")
E("s_waitcnt vmcnt(0) lgkmcnt(0)")
for o in pv_mfmas(2): E(o)
for qb in range(3):
    E(f"v_mov_b32 v{VT}, v{VL+qb}")
    E("s_nop 1")
    E(f"v_permlane32_swap_b32 v{VL+qb}, v{VT}")
    E(f"v_add_f32 v{VL+qb}, v{VL+qb}, v{VT}")
E(f"v_and_b32 v3, 31, v{VLANE}")
E("v_lshlrev_b32 v4, 3, v3")
E(f"v_add_u32 v5, s{S_RBASE}, v4")
for qb in range(3):
    E(f"v_mov_b32 v{VT}, v{VMP+qb}")
    E(f"v_mov_b32 v{VT+1}, v{VL+qb}")
    E(f"ds_write_b64 v5, v[{VT}:{VT+1}] offset:{qb*256}")
E(f"v_lshlrev_b32 v6, 4, v{VLANE}")
E(f"v_add_u32 v7, s{S_RBASE}, v6")
for w in range(4):
    if w < 3:
        E(f"s_cmp_eq_u32 s{S_W}, {w}"); E(f"s_cbranch_scc1 EPI_{w}")
    else: E(f"s_branch EPI_{w}")
def poff(dslot, qb, r4): return 1024 + ((dslot*3+qb)*4 + r4)*1024
for w in range(4):
    L(f"EPI_{w}")
    for qb in range(3):
        if qb == 2: E("s_nop 7")
        for dw in range(4):
            if dw == w: continue
            dslot = dw if dw < w else dw-1
            for r4 in range(4):
                a_ = O(qb, dw) + r4*4
                E(f"ds_write_b128 v7, a[{a_}:{a_+3}] offset:{poff(dslot,qb,r4)}")
        for r in range(16): E(f"v_accvgpr_read_b32 v{16+qb*16+r}, a{O(qb,w)+r}")
    STAMP(32)
    E("s_waitcnt lgkmcnt(0)")
    STAMP(33)
    E("s_barrier")
    STAMP(34)
    for qb in range(3):
        for ws in range(4):
            r = 160 + (qb*4+ws)*2
            if ws*40960 < 65536: E(f"ds_read_b64 v[{r}:{r+1}], v4 offset:{ws*40960+qb*256}")
            else:
                E(f"v_add_u32 v8, {ws*40960}, v4")
                E(f"ds_read_b64 v[{r}:{r+1}], v8 offset:{qb*256}")
    srcs = [ws for ws in range(4) if ws != w]
    for k_, ws in enumerate(srcs): E(f"v_add_u32 v{9+k_}, {ws*40960}, v6")
    def read_src(k_, base):
        ws = srcs[k_]
        dslot = w if w < ws else w-1
        for qb in range(3):
            for r4 in range(4):
                t = base + (qb*4+r4)*4
                E(f"ds_read_b128 v[{t}:{t+3}], v{9+k_} offset:{poff(dslot,qb,r4)}")
    read_src(0, 64)
    E("s_waitcnt lgkmcnt(12)")
    for qb in range(3):
        r = 160 + qb*8
        E(f"v_max_f32 v{VT}, v{r}, v{r+2}")
        E(f"v_max3_f32 v{VT}, v{VT}, v{r+4}, v{r+6}")
        for ws in range(4):
            E(f"v_sub_f32 v{r+2*ws}, v{r+2*ws}, v{VT}")
            E(f"v_exp_f32 v{r+2*ws}, v{r+2*ws}")
        E("s_nop 0")
        E(f"v_mul_f32 v{VT+1}, v{r}, v{r+1}")
        for ws in range(1, 4): E(f"v_fmac_f32 v{VT+1}, v{r+2*ws}, v{r+2*ws+1}")
        E(f"v_rcp_f32 v{VT+1}, v{VT+1}")
        E("s_nop 0")
        for ws in range(4): E(f"v_mul_f32 v{r+2*ws}, v{r+2*ws}, v{VT+1}")
    for qb in range(3):
        for r in range(16): E(f"v_mul_f32 v{16+qb*16+r}, v{16+qb*16+r}, v{160+qb*8+2*w}")
    read_src(1, 112)
    E("s_waitcnt lgkmcnt(12)")
    for qb in range(3):
        for r in range(16): E(f"v_fmac_f32 v{16+qb*16+r}, v{64+qb*16+r}, v{160+qb*8+2*srcs[0]}")
    read_src(2, 64)
    E("s_waitcnt lgkmcnt(12)")
    for qb in range(3):
        for r in range(16): E(f"v_fmac_f32 v{16+qb*16+r}, v{112+qb*16+r}, v{160+qb*8+2*srcs[1]}")
    E("s_waitcnt lgkmcnt(0)")
    for qb in range(3):
        for r in range(16): E(f"v_fmac_f32 v{16+qb*16+r}, v{64+qb*16+r}, v{160+qb*8+2*srcs[2]}")
    STAMP(35)
    for qb in range(3):
        if qb > 0: E(f"v_add_u32 v8, {qb*8192}, v{VOST}")
        for kp in range(2):
            b_ = 16 + qb*16 + kp*8
            t = 112 + (qb*2+kp)*4
            E(f"v_cvt_pk_bf16_f32 v{t}, v{b_}, v{b_+1}")
            E(f"v_cvt_pk_bf16_f32 v{t+1}, v{b_+2}, v{b_+3}")
            E(f"v_cvt_pk_bf16_f32 v{t+2}, v{b_+4}, v{b_+5}")
            E(f"v_cvt_pk_bf16_f32 v{t+3}, v{b_+6}, v{b_+7}")
            E("s_nop 1")
            E(f"v_permlane32_swap_b32 v{t}, v{t+2}")
            E(f"v_permlane32_swap_b32 v{t+1}, v{t+3}")
            va = VOST if qb == 0 else 8
            E(f"buffer_store_dwordx4 v[{t}:{t+3}], v{va}, s[24:27], 0 offen offset:{kp*32}")
    if PROF:
        E("s_memtime s[56:57]")
        E("s_memrealtime s[66:67]")
        E("s_waitcnt lgkmcnt(0)")
        E("s_mov_b32 s62, 256"); E("s_mov_b32 s63, 0x00020000")
        E("s_sub_u32 s52, s52, s50"); E("s_sub_u32 s54, s54, s50"); E("s_sub_u32 s56, s56, s50"); E("s_sub_u32 s66, s66, s64")
        E(f"s_cmp_lg_u32 s{S_W}, 0")
        E(f"s_cbranch_scc1 SKIP_{w}")
        E("s_and_b32 s69, s2, 7"); E("s_lshl_b32 s69, s69, 2")
        E(f"v_mov_b32 v9, s{PSEL}"); E("v_mov_b32 v12, s69")
        E("s_lshr_b32 s70, s56, 4"); E("s_lshl_b32 s70, s70, 16"); E("s_or_b32 s70, s70, s66")
        E("v_mov_b32 v8, s70")
        E("s_mov_b64 exec, 1")
        E("buffer_atomic_umax v8, v12, s[60:63], 0 offen")
        E("buffer_atomic_umax v9, v12, s[60:63], 0 offen offset:32")
        E("s_mov_b64 exec, -1")
        out.append(f"SKIP_{w}:")
    E("s_endpgm")
L("L_END")
E("s_endpgm")
for par in range(2):
    for qb in range(3): rare_path(qb, f"{par}_{qb}")
out += ['.section .rodata,"a"', '.p2align 6', '.amdhsa_kernel standalone__gqa_softmax__near_ridge_kernel',
        '  .amdhsa_next_free_vgpr 512', '  .amdhsa_next_free_sgpr 72', '  .amdhsa_accum_offset 256',
        '  .amdhsa_group_segment_fixed_size 0', '  .amdhsa_kernarg_size 48', '  .amdhsa_user_sgpr_count 2',
        '  .amdhsa_user_sgpr_kernarg_segment_ptr 1', '  .amdhsa_system_sgpr_workgroup_id_x 1', '.end_amdhsa_kernel']
open(sys.argv[1] if len(sys.argv) > 1 else 'standalone__gqa_softmax__near_ridge.s', 'w').write("\n".join(out) + "\n")
```
